```python
import torch

def _softmax(x, axis=-1):
    return torch.softmax(x, dim=axis)
def _gelu(x):
    return torch.nn.functional.gelu(x, approximate="tanh")
def _silu(x):
    return torch.nn.functional.silu(x)
def _sigmoid(x):
    return torch.sigmoid(x)
def _layernorm(x, axis=-1, eps=1e-5):
    m = x.mean(dim=axis, keepdim=True)
    v = x.var(dim=axis, keepdim=True, unbiased=False)
    return (x - m) / torch.sqrt(v + eps)
def _scatter_add(tgt, idx, src, axis=0):
    return tgt.clone().index_add_(axis, idx, src)
def _segment_sum(src, seg, n):
    out = torch.zeros((n,) + src.shape[1:], dtype=src.dtype)
    return out.index_add_(0, seg, src)
def _pad(x, pw):
    flat = tuple(v for pair in reversed(pw) for v in pair)
    return torch.nn.functional.pad(x, flat)

kernel_name = 'standalone__gqa_softmax__near_ridge'

def setup_inputs():

    _w = (lambda a: (lambda t: t.to(torch.bfloat16) if t.is_floating_point() else t)(torch.as_tensor(a)))
    B, Hq, Hkv, Sq, Sk, D = 8, 32, 32, 192, 1024, 128
    return {
        "q": _w((lambda *s: torch.randn(*s, dtype=torch.bfloat16) * 0.8)(B, Hq, Sq, D)),
        "k": _w((lambda *s: torch.randn(*s, dtype=torch.bfloat16) * 0.8)(B, Hkv, Sk, D)),
        "v": _w((lambda *s: torch.randn(*s, dtype=torch.bfloat16) * 0.05)(B, Hkv, Sk, D)),
    }

def reference(q, k, v):
    B, Hq, Sq, D = q.shape
    Hkv = k.shape[1]
    rep = Hq // Hkv
    k = (lambda x, n, axis: torch.repeat_interleave(x, n, dim=axis))(k, rep, axis=1)
    v = (lambda x, n, axis: torch.repeat_interleave(x, n, dim=axis))(v, rep, axis=1)
    scale = D ** -0.5
    scores = torch.einsum("bhqd,bhkd->bhqk", q, k) * scale
    p = _softmax(scores, axis=-1)
    return torch.einsum("bhqk,bhkd->bhqd", p, v)
```

```python
import sys, re, struct, math

NAME = "standalone__gqa_softmax__near_ridge"

class Opt:
    nt = 0
    rot = 1
    bar_b = 17
    T = 8.0
    prio_loader = 3
    store_nt = 0
    q_nt = 0

def f2u(f):
    return struct.unpack("<I", struct.pack("<f", f))[0]

class I:
    __slots__ = ("text", "kind", "dst", "src", "csrc")
    def __init__(self, text, kind="other", dst=(), src=(), csrc=()):
        self.text = text; self.kind = kind
        self.dst = set(dst); self.src = set(src); self.csrc = set(csrc)

def rng(base, n):
    return list(range(base, base + n))

def vr(base, n=1):
    return f"v{base}" if n == 1 else f"v[{base}:{base+n-1}]"

class Emitter:
    def __init__(self):
        self.out = []
        self.ldsq = []
    def raw(self, s):
        self.out.append(I(s, kind="raw"))
    def label(self, s):
        self.out.append(I(s + ":", kind="label"))
    def add(self, ins):
        self.out.append(ins)
    def salu(self, t):
        self.out.append(I(t, kind="salu"))
    def valu(self, t, dst=(), src=(), trans=False):
        self.out.append(I(t, kind="trans" if trans else "valu", dst=dst, src=src))
    def mfma(self, d, a, b, c=None):
        cs = "0" if c is None else vr(c, 4)
        self.out.append(I(f"v_mfma_f32_16x16x32_bf16 {vr(d,4)}, {vr(a,4)}, {vr(b,4)}, {cs}", kind="mfma",
                          dst=rng(d, 4), src=rng(a, 4) + rng(b, 4), csrc=() if c is None else rng(c, 4)))
    def lds(self, t, tag, dst=(), src=()):
        self.out.append(I(t, kind="lds", dst=dst, src=src))
        self.ldsq.append(tag)
    def wait_lds(self, tag):
        if tag not in self.ldsq:
            return
        idx = self.ldsq.index(tag)
        n = len(self.ldsq) - 1 - idx
        assert n <= 15
        self.out.append(I(f"s_waitcnt lgkmcnt({n})", kind="wait"))
        self.ldsq = self.ldsq[idx + 1:]
    def wait_lds_all(self):
        self.out.append(I("s_waitcnt lgkmcnt(0)", kind="wait"))
        self.ldsq = []
    def nop(self, n):
        self.out.append(I(f"s_nop {n}", kind="nop", dst=(), src=()))

def states(ins):
    if ins.kind in ("raw", "label"):
        return 0
    if ins.kind == "nop":
        return int(ins.text.split()[1]) + 1
    return 1

def check_hazards(trace, name=""):
    bad = 0
    n = len(trace)
    for i, c in enumerate(trace):
        if c.kind in ("raw", "label", "nop", "wait", "salu"):
            continue
        dist = 0
        for j in range(i - 1, max(-1, i - 40), -1):
            p = trace[j]
            if dist >= 20:
                break
            need = 0
            if p.kind in ("valu", "trans", "perm"):
                if c.kind == "mfma" and (p.dst & (c.src | c.csrc)):
                    need = max(need, 2)
                if c.kind == "perm" and (p.dst & c.src):
                    need = max(need, 2)
                if c.kind == "rfl" and (p.dst & c.src):
                    need = max(need, 1)
                if p.kind == "trans" and c.kind in ("valu", "perm") and (p.dst & c.src):
                    need = max(need, 1)
            if p.kind == "mfma":
                if c.kind == "mfma":
                    if p.dst & c.src:
                        need = max(need, 8)
                    if p.dst & c.csrc and p.dst != c.csrc:
                        need = max(need, 6)
                    if p.dst & c.dst and not (p.dst == c.csrc):
                        need = max(need, 8)
                else:
                    if p.dst & (c.src | c.dst):
                        need = max(need, 8)
                    if c.kind in ("valu", "trans", "perm") and (p.csrc & c.dst):
                        need = max(need, 3)
            if p.kind == "store" and c.kind in ("valu", "trans", "perm", "lds", "mfma") and (p.src & c.dst):
                need = max(need, 2)
            if need > dist:
                print(f"HAZARD[{name}] need {need} have {dist}: '{p.text}' -> '{c.text}'", file=sys.stderr)
                bad += 1
            dist += states(p)
    return bad

O_BASE = 0
Q_BASE = 96
S_BASE = [144, 168]
KF = 192
VF = 208
AK = 224
AV = 228
NM = 236
LS = 239
TMP = 242

def Oreg(qb, db): return O_BASE + (qb * 8 + db) * 4
def Qreg(qb, s): return Q_BASE + (qb * 4 + s) * 4
def Xreg(buf, qb, kb, r=0): return S_BASE[buf] + qb * 8 + kb * 4 + r

sQ, sK, sV, sO = 12, 16, 20, 24
sW = 28
sC = 29
sT = 30
sCnt = 31
s4096, s8192 = 32, 33
sKo, sVo = 34, 35
sM0K = 36
sTmp = 37
sTmp2 = 38

SLOT = 16384

def k_read(e, f, uslot):
    kb, s = f // 4, f % 4
    d = KF + (f % 4) * 4
    e.lds(f"ds_read_b128 {vr(d,4)}, v{AK+s} offset:{uslot*SLOT + kb*4096}", ("K", f), dst=rng(d, 4), src=[AK + s])

def v_read(e, db, jh, uslot):
    d = VF + (db % 4) * 4 + jh * 2
    e.lds(f"ds_read_b64_tr_b16 {vr(d,2)}, v{AV+db} offset:{uslot*SLOT + 8192 + jh*4096}", ("V", db, jh),
          dst=rng(d, 2), src=[AV + db])

def softmax_ops(buf):
    ops = []
    for qb in range(3):
        X = [Xreg(buf, qb, 0) + i for i in range(8)]
        def E(i, X=X): return lambda e: e.valu(f"v_exp_f32 v{X[i]}, v{X[i]}", dst=[X[i]], src=[X[i]], trans=True)
        def A(i, X=X, qb=qb): return lambda e: e.valu(f"v_add_f32 v{LS+qb}, v{LS+qb}, v{X[i]}", dst=[LS + qb], src=[LS + qb, X[i]])
        def C(i, X=X): return lambda e: e.valu(f"v_cvt_pk_bf16_f32 v{X[i]}, v{X[2*i]}, v{X[2*i+1]}", dst=[X[i]], src=[X[2*i], X[2*i+1]])
        seq = [E(0), E(1), A(0), E(2), A(1), E(3), A(2), C(0), E(4), A(3), C(1), E(5), A(4), E(6), A(5), E(7), A(6), C(2), A(7), C(3)]
        ops += seq
    return ops

def fma_max_ops(buf):
    ops = []
    order = [(qb, kb, r) for kb in range(2) for qb in range(3) for r in range(4)]
    regs = [Xreg(buf, qb, kb, r) for (qb, kb, r) in order]
    mx = TMP
    def F(i):
        qb = order[i][0]; x = regs[i]
        return lambda e: e.valu(f"v_fma_f32 v{x}, v{x}, s{sC}, v{NM+qb}", dst=[x], src=[x, NM + qb])
    def M0():
        return lambda e: e.valu(f"v_max3_f32 v{mx}, v{regs[0]}, v{regs[1]}, v{regs[2]}", dst=[mx], src=regs[0:3])
    def M(i):
        return lambda e: e.valu(f"v_max3_f32 v{mx}, v{mx}, v{regs[i]}, v{regs[i+1]}", dst=[mx], src=[mx, regs[i], regs[i + 1]])
    def ML():
        return lambda e: e.valu(f"v_max_f32 v{mx}, v{mx}, v{regs[23]}", dst=[mx], src=[mx, regs[23]])
    ops += [F(0), F(1), F(2), F(3), M0()]
    i = 3
    nf = 4
    while i < 23:
        while nf <= min(i + 2, 23):
            ops.append(F(nf)); nf += 1
        ops.append(M(i)); i += 2
    while nf <= 23:
        ops.append(F(nf)); nf += 1
    ops.append(ML())
    return ops

def spread(n_slots, ops, lead=0):
    res = [[] for _ in range(n_slots + 1)]
    res[0] = ops[:lead]
    rest = ops[lead:]
    for k, op in enumerate(rest):
        res[1 + (k * n_slots) // len(rest)].append(op)
    return res

def phase_A(e, o, cur, nxt, uslot, do_qk=True, do_sm=True, lead=4):
    sm = softmax_ops(cur) if do_sm else []
    if not do_qk:
        for op in sm: op(e)
        return
    fill = spread(24, sm, lead=lead if do_sm else 0) if sm else [[] for _ in range(25)]
    for op in fill[0]: op(e)
    for a in range(24):
        kb, s, qb = a // 12, (a % 12) // 3, a % 3
        f = a // 3
        if a % 3 == 0:
            e.wait_lds(("K", f))
        d = Xreg(nxt, qb, kb)
        e.mfma(d, KF + (f % 4) * 4, Qreg(qb, s), None if s == 0 else d)
        if a % 3 == 2 and f + 4 < 8:
            k_read(e, f + 4, uslot)
        if do_sm and a >= 13 and a < 21:
            k = a - 13
            v_read(e, k // 2, k % 2, uslot)
        for op in fill[1 + a]: op(e)

def phase_B(e, o, cur, nxt, uslot, next_uslot, do_fma=True, barrier=True, toggle=False, rare_label=None, pre_k=True):
    fm = fma_max_ops(nxt) if do_fma else []
    fill = spread(22, fm) if fm else [[] for _ in range(23)]
    tog = []
    for b in range(24):
        db, qb = b // 3, b % 3
        if b % 3 == 0:
            e.wait_lds(("V", db, 1))
        e.mfma(Oreg(qb, db), VF + (db % 4) * 4, Xreg(cur, qb, 0), Oreg(qb, db))
        if b % 3 == 2 and db + 4 < 8:
            v_read(e, db + 4, 0, uslot)
            v_read(e, db + 4, 1, uslot)
        if toggle and b == 12:
            for s in range(4):
                e.valu(f"v_xor_b32 v{AK+s}, 0x10000, v{AK+s}", dst=[AK + s], src=[AK + s])
        if toggle and b in (13, 14):
            for d in range(4):
                dd = (b - 13) * 4 + d
                e.valu(f"v_xor_b32 v{AV+dd}, 0x10000, v{AV+dd}", dst=[AV + dd], src=[AV + dd])
        if b == o.bar_b and barrier:
            e.wait_lds_all()
            e.salu("s_barrier")
        if barrier and pre_k and o.bar_b <= b < o.bar_b + 4:
            k_read(e, b - o.bar_b, next_uslot)
        if b < 22:
            for op in fill[1 + b]: op(e)
        if b == 22 and do_fma:
            e.valu(f"v_cmp_lt_f32 vcc, s{sT}, v{TMP}", src=[TMP])
    if do_fma:
        e.salu(f"s_cbranch_vccnz {rare_label}")
        e.label(rare_label + "_ret")

def xlane_reduce(e, op, t, a, b):
    ins = "v_max_f32" if op == "max" else "v_add_f32"
    for swp in ("v_permlane16_swap_b32", "v_permlane32_swap_b32"):
        e.valu(f"v_mov_b32 v{a}, v{t}", dst=[a], src=[t])
        e.valu(f"v_mov_b32 v{b}, v{t}", dst=[b], src=[t])
        e.nop(1)
        e.add(I(f"{swp} v{a}, v{b}", kind="perm", dst=[a, b], src=[a, b]))
        e.nop(1)
        e.valu(f"{ins} v{t}, v{a}, v{b}", dst=[t], src=[a, b])

def rare_path(e, label, buf):
    e.label(label)
    e.nop(15)
    for qb in range(3):
        X = [Xreg(buf, qb, 0) + i for i in range(8)]
        t, a, b = TMP + 1, TMP + 2, TMP + 3
        e.valu(f"v_max3_f32 v{t}, v{X[0]}, v{X[1]}, v{X[2]}", dst=[t], src=X[0:3])
        e.valu(f"v_max3_f32 v{t}, v{t}, v{X[3]}, v{X[4]}", dst=[t], src=[t, X[3], X[4]])
        e.valu(f"v_max3_f32 v{t}, v{t}, v{X[5]}, v{X[6]}", dst=[t], src=[t, X[5], X[6]])
        e.valu(f"v_max3_f32 v{t}, v{t}, v{X[7]}, 0", dst=[t], src=[t, X[7]])
        xlane_reduce(e, "max", t, a, b)
        e.valu(f"v_sub_f32 v{NM+qb}, v{NM+qb}, v{t}", dst=[NM + qb], src=[NM + qb, t])
        for i in range(8):
            e.valu(f"v_sub_f32 v{X[i]}, v{X[i]}, v{t}", dst=[X[i]], src=[X[i], t])
        e.valu(f"v_exp_f32 v{a}, -v{t}", dst=[a], src=[t], trans=True)
        e.nop(1)
        e.valu(f"v_mul_f32 v{LS+qb}, v{LS+qb}, v{a}", dst=[LS + qb], src=[LS + qb, a])
        for db in range(8):
            for r in range(4):
                x = Oreg(qb, db) + r
                e.valu(f"v_mul_f32 v{x}, v{x}, v{a}", dst=[x], src=[x, a])
    e.nop(3)
    e.salu(f"s_branch {label}_ret")

def first_max(e, buf):
    for qb in range(3):
        X = [Xreg(buf, qb, 0) + i for i in range(8)]
        t, a, b = TMP + 1 + 3 * qb, TMP + 2 + 3 * qb, TMP + 3 + 3 * qb
        for i in range(8):
            e.valu(f"v_mul_f32 v{X[i]}, s{sC}, v{X[i]}", dst=[X[i]], src=[X[i]])
        e.valu(f"v_max3_f32 v{t}, v{X[0]}, v{X[1]}, v{X[2]}", dst=[t], src=X[0:3])
        e.valu(f"v_max3_f32 v{t}, v{t}, v{X[3]}, v{X[4]}", dst=[t], src=[t, X[3], X[4]])
        e.valu(f"v_max3_f32 v{t}, v{t}, v{X[5]}, v{X[6]}", dst=[t], src=[t, X[5], X[6]])
        e.valu(f"v_max_f32 v{t}, v{t}, v{X[7]}", dst=[t], src=[t, X[7]])
        xlane_reduce(e, "max", t, a, b)
        e.valu(f"v_sub_f32 v{NM+qb}, 0, v{t}", dst=[NM + qb], src=[t])
        for i in range(8):
            e.valu(f"v_sub_f32 v{X[i]}, v{X[i]}, v{t}", dst=[X[i]], src=[X[i], t])

def gen(o):
    e = Emitter()
    c = math.log2(math.e) / math.sqrt(128.0)
    e.salu("s_cmp_ge_u32 s2, 256")
    e.salu("s_cbranch_scc1 L_end")
    e.salu("s_load_dwordx8 s[4:11], s[0:1], 0")
    e.valu("v_lshrrev_b32 v1, 6, v0", dst=[1], src=[0])
    e.valu("v_and_b32 v0, 63, v0", dst=[0], src=[0])
    e.add(I(f"v_readfirstlane_b32 s{sW}, v1", kind="rfl", src=[1]))
    e.valu("v_and_b32 v2, 15, v0", dst=[2], src=[0])
    e.valu("v_lshrrev_b32 v3, 4, v0", dst=[3], src=[0])
    e.salu(f"s_mul_i32 s{sTmp}, s2, 49152")
    e.salu(f"s_lshl_b32 s{sTmp2}, s2, 18")
    e.salu(f"s_mov_b32 s{sQ+2}, 49152")
    e.salu(f"s_mov_b32 s{sQ+3}, 0x00020000")
    e.salu(f"s_mov_b32 s{sK+2}, 262144")
    e.salu(f"s_mov_b32 s{sK+3}, 0x00020000")
    e.salu(f"s_mov_b32 s{sV+2}, 262144")
    e.salu(f"s_mov_b32 s{sV+3}, 0x00020000")
    e.salu(f"s_mov_b32 s{sO+2}, 49152")
    e.salu(f"s_mov_b32 s{sO+3}, 0x00020000")
    e.salu(f"s_mov_b32 s{s4096}, 4096")
    e.salu(f"s_mov_b32 s{s8192}, 8192")
    e.salu(f"s_cmp_ge_u32 s{sW}, 4")
    e.salu("s_cbranch_scc1 L_loader")

    e.salu(f"s_mul_i32 s{sCnt}, s{sW}, {48*256}")
    e.valu("v_lshlrev_b32 v4, 8, v2", dst=[4], src=[2])
    e.valu("v_lshl_add_u32 v4, v3, 4, v4", dst=[4], src=[3, 4])
    e.valu(f"v_add_u32 v4, s{sCnt}, v4", dst=[4], src=[4])
    e.salu("s_waitcnt lgkmcnt(0)")
    e.salu(f"s_add_u32 s{sQ}, s4, s{sTmp}")
    e.salu(f"s_addc_u32 s{sQ+1}, s5, 0")
    e.salu(f"s_and_b32 s{sQ+1}, s{sQ+1}, 0xffff")
    qnt = " nt" if o.q_nt else ""
    for qb in range(3):
        so = ["0", f"s{s4096}", f"s{s8192}"][qb]
        for s in range(4):
            d = Qreg(qb, s)
            e.add(I(f"buffer_load_dwordx4 {vr(d,4)}, v4, s[{sQ}:{sQ+3}], {so} offen offset:{s*64}{qnt}", kind="vmem",
                    dst=rng(d, 4), src=[4]))
    e.salu(f"s_add_u32 s{sO}, s10, s{sTmp}")
    e.salu(f"s_addc_u32 s{sO+1}, s11, 0")
    e.salu(f"s_and_b32 s{sO+1}, s{sO+1}, 0xffff")
    e.salu(f"s_mov_b32 s{sC}, 0x{f2u(c):08x}")
    e.salu(f"s_mov_b32 s{sT}, 0x{f2u(o.T):08x}")
    VOUT = TMP + 13
    e.valu("v_and_b32 v5, 1, v3", dst=[5], src=[3])
    e.valu("v_lshrrev_b32 v6, 1, v3", dst=[6], src=[3])
    e.valu(f"v_lshlrev_b32 v{VOUT}, 8, v2", dst=[VOUT], src=[2])
    e.valu(f"v_lshl_add_u32 v{VOUT}, v5, 5, v{VOUT}", dst=[VOUT], src=[5, VOUT])
    e.valu(f"v_lshl_add_u32 v{VOUT}, v6, 4, v{VOUT}", dst=[VOUT], src=[6, VOUT])
    e.valu(f"v_add_u32 v{VOUT}, s{sCnt}, v{VOUT}", dst=[VOUT], src=[VOUT])
    e.valu("v_xor_b32 v7, v3, v2", dst=[7], src=[3, 2])
    e.valu("v_lshlrev_b32 v7, 4, v7", dst=[7], src=[7])
    e.valu("v_lshl_add_u32 v7, v2, 8, v7", dst=[7], src=[2, 7])
    e.valu("v_add_u32 v7, 0x10000, v7", dst=[7], src=[7])
    for s in range(4):
        e.valu(f"v_xor_b32 v{AK+s}, {s*64}, v7", dst=[AK + s], src=[7])
    e.valu("v_lshrrev_b32 v8, 2, v2", dst=[8], src=[2])
    e.valu("v_and_b32 v9, 3, v0", dst=[9], src=[0])
    e.valu("v_lshl_add_u32 v10, v3, 2, v8", dst=[10], src=[3, 8])
    e.valu("v_and_b32 v11, 7, v10", dst=[11], src=[10])
    e.valu("v_lshlrev_b32 v11, 5, v11", dst=[11], src=[11])
    e.valu("v_lshl_add_u32 v11, v10, 8, v11", dst=[11], src=[10, 11])
    e.valu("v_lshl_add_u32 v11, v9, 3, v11", dst=[11], src=[9, 11])
    for db in range(8):
        e.valu(f"v_xor_b32 v{AV+db}, {db*32}, v11", dst=[AV + db], src=[11])
    for i in range(96):
        e.valu(f"v_mov_b32 v{O_BASE+i}, 0", dst=[O_BASE + i])
    for qb in range(3):
        e.valu(f"v_mov_b32 v{LS+qb}, 0", dst=[LS + qb])
    e.salu("s_barrier")
    for f in range(4):
        k_read(e, f, 3)
    e.salu("s_waitcnt vmcnt(0)")
    phase_A(e, o, cur=1, nxt=0, uslot=3, do_qk=True, do_sm=False)
    for s in range(4):
        e.valu(f"v_xor_b32 v{AK+s}, 0x10000, v{AK+s}", dst=[AK + s], src=[AK + s])
    e.wait_lds_all()
    e.salu("s_barrier")
    for f in range(4):
        k_read(e, f, 0)
    e.nop(3)
    first_max(e, 0)
    e.salu(f"s_mov_b32 s{sCnt}, 7")
    pro_end = len(e.out)
    ldsq_at_loop = list(e.ldsq)
    rares = []
    e.label("L_loop")
    for u in range(4):
        cur, nxt = u % 2, (u + 1) % 2
        phase_A(e, o, cur, nxt, u)
        lab = f"L_rare_m{u}"
        phase_B(e, o, cur, nxt, u, (u + 1) % 4, toggle=(u == 3), rare_label=lab)
        rares.append((lab, nxt))
    assert e.ldsq == ldsq_at_loop, (e.ldsq, ldsq_at_loop)
    e.salu(f"s_sub_u32 s{sCnt}, s{sCnt}, 1")
    e.salu(f"s_cmp_lg_u32 s{sCnt}, 0")
    e.salu("s_cbranch_scc1 L_loop")
    loop_end = len(e.out)
    for u in range(3):
        cur, nxt = u % 2, (u + 1) % 2
        phase_A(e, o, cur, nxt, u)
        lab = f"L_rare_t{u}"
        last = (u == 2)
        phase_B(e, o, cur, nxt, u, (u + 1) % 4, rare_label=lab, barrier=not last)
        rares.append((lab, nxt))
    cur = 1
    phase_A(e, o, cur, 0, 3, do_qk=False, do_sm=True)
    e.wait_lds_all()
    e.salu("s_barrier")
    for db in range(4):
        v_read(e, db, 0, 3); v_read(e, db, 1, 3)
    INV = TMP + 10
    for qb in range(3):
        xlane_reduce(e, "add", LS + qb, TMP + 1, TMP + 2)
    for qb in range(3):
        e.valu(f"v_rcp_f32 v{INV+qb}, v{LS+qb}", dst=[INV + qb], src=[LS + qb], trans=True)
    snt = " nt" if o.store_nt else ""
    def epi(qb, ep, quad):
        st = S_BASE[0] + quad * 4
        ops = []
        for h in range(2):
            ob = Oreg(qb, 2 * ep + h)
            for r in range(4):
                ops.append(lambda e, x=ob + r: e.valu(f"v_mul_f32 v{x}, v{x}, v{INV+qb}", dst=[x], src=[x, INV + qb]))
            ops.append(lambda e, ob=ob, h=h: e.valu(f"v_cvt_pk_bf16_f32 v{st+2*h}, v{ob}, v{ob+1}", dst=[st + 2 * h], src=[ob, ob + 1]))
            ops.append(lambda e, ob=ob, h=h: e.valu(f"v_cvt_pk_bf16_f32 v{st+2*h+1}, v{ob+2}, v{ob+3}", dst=[st + 2 * h + 1], src=[ob + 2, ob + 3]))
        ops.append(lambda e: e.nop(1))
        ops.append(lambda e: e.add(I(f"v_permlane16_swap_b32 v{st}, v{st+2}", kind="perm", dst=[st, st + 2], src=[st, st + 2])))
        ops.append(lambda e: e.add(I(f"v_permlane16_swap_b32 v{st+1}, v{st+3}", kind="perm", dst=[st + 1, st + 3], src=[st + 1, st + 3])))
        so = ["0", f"s{s4096}", f"s{s8192}"][qb]
        ops.append(lambda e: e.add(I(f"buffer_store_dwordx4 {vr(st,4)}, v{VOUT}, s[{sO}:{sO+3}], {so} offen offset:{ep*64}{snt}",
                                     kind="store", src=rng(st, 4) + [VOUT])))
        return ops
    pend = []
    quad = 0
    for b in range(24):
        db, qb = b // 3, b % 3
        if b % 3 == 0:
            e.wait_lds(("V", db, 1))
        e.mfma(Oreg(qb, db), VF + (db % 4) * 4, Xreg(cur, qb, 0), Oreg(qb, db))
        if b % 3 == 2 and db + 4 < 8:
            v_read(e, db + 4, 0, 3); v_read(e, db + 4, 1, 3)
        if b >= 8 and (b - 8) % 6 == 0:
            ep = (b - 8) // 6
            for q in range(3):
                pend += epi(q, ep, quad); quad = (quad + 1) % 6
        k = 0
        while pend and k < 7:
            pend.pop(0)(e); k += 1
    for op in pend: op(e)
    e.nop(7)
    for q in range(3):
        for op in epi(q, 3, quad): op(e)
        quad = (quad + 1) % 6
    e.salu("s_endpgm")
    main_end = len(e.out)

    tr = e.out[:loop_end] + e.out[pro_end:loop_end] + e.out[loop_end:main_end]
    nb = check_hazards(tr, "main")

    for lab, buf in rares:
        st = len(e.out)
        rare_path(e, lab, buf)
        nb += check_hazards(e.out[st:], lab)

    e.label("L_loader")
    e.salu(f"s_setprio {o.prio_loader}")
    e.salu(f"s_sub_u32 s{sW}, s{sW}, 4")
    e.salu(f"s_lshl_b32 s{sCnt}, s{sW}, 3")
    e.valu(f"v_add_u32 v4, s{sCnt}, v3", dst=[4], src=[3])
    e.valu("v_add_u32 v5, 4, v4", dst=[5], src=[4])
    e.valu("v_and_b32 v6, 15, v4")
    e.valu("v_xor_b32 v6, v6, v2")
    e.valu("v_lshlrev_b32 v6, 4, v6")
    e.valu("v_lshl_add_u32 v10, v4, 8, v6")
    e.valu("v_and_b32 v6, 15, v5")
    e.valu("v_xor_b32 v6, v6, v2")
    e.valu("v_lshlrev_b32 v6, 4, v6")
    e.valu("v_lshl_add_u32 v11, v4, 8, v6")
    e.valu("v_and_b32 v6, 7, v4")
    e.valu("v_lshlrev_b32 v6, 1, v6")
    e.valu("v_xor_b32 v6, v6, v2")
    e.valu("v_lshlrev_b32 v6, 4, v6")
    e.valu("v_lshl_add_u32 v12, v4, 8, v6")
    e.valu("v_and_b32 v6, 7, v5")
    e.valu("v_lshlrev_b32 v6, 1, v6")
    e.valu("v_xor_b32 v6, v6, v2")
    e.valu("v_lshlrev_b32 v6, 4, v6")
    e.valu("v_lshl_add_u32 v13, v4, 8, v6")
    e.salu(f"s_lshl_b32 s{sM0K}, s{sW}, 11")
    if o.rot:
        e.salu(f"s_mul_i32 s{sKo}, s2, {o.rot}")
        e.salu(f"s_and_b32 s{sKo}, s{sKo}, 31")
        e.salu(f"s_lshl_b32 s{sKo}, s{sKo}, 13")
    else:
        e.salu(f"s_mov_b32 s{sKo}, 0")
    e.salu("s_waitcnt lgkmcnt(0)")
    e.salu(f"s_add_u32 s{sK}, s6, s{sTmp2}")
    e.salu(f"s_addc_u32 s{sK+1}, s7, 0")
    e.salu(f"s_and_b32 s{sK+1}, s{sK+1}, 0xffff")
    e.salu(f"s_add_u32 s{sV}, s8, s{sTmp2}")
    e.salu(f"s_addc_u32 s{sV+1}, s9, 0")
    e.salu(f"s_and_b32 s{sV+1}, s{sV+1}, 0xffff")
    nt = " nt" if o.nt else ""
    def issue(j):
        slot = (j - 1) % 8
        if j >= 1:
            e.salu(f"s_mov_b32 s{sVo}, s{sKo}")
            if j <= 31:
                e.salu(f"s_add_u32 s{sKo}, s{sKo}, 8192")
                e.salu(f"s_and_b32 s{sKo}, s{sKo}, 0x3ffff")
        if j <= 31:
            e.salu(f"s_add_u32 m0, s{sM0K}, {slot*SLOT}")
            e.nop(0)
            e.add(I(f"buffer_load_dwordx4 v10, s[{sK}:{sK+3}], s{sKo} offen{nt} lds", kind="vmem"))
            e.add(I(f"buffer_load_dwordx4 v11, s[{sK}:{sK+3}], s{sKo} offen offset:1024{nt} lds", kind="vmem"))
        if j >= 1:
            e.salu(f"s_add_u32 m0, s{sM0K}, {slot*SLOT + 8192}")
            e.nop(0)
            e.add(I(f"buffer_load_dwordx4 v12, s[{sV}:{sV+3}], s{sVo} offen{nt} lds", kind="vmem"))
            e.add(I(f"buffer_load_dwordx4 v13, s[{sV}:{sV+3}], s{sVo} offen offset:1024{nt} lds", kind="vmem"))
    def nins(j): return 2 if j in (0, 32) else 4
    for j in range(8):
        issue(j)
    for j in range(33):
        hi = min(32, max(7, j + 6))
        N = sum(nins(i) for i in range(j + 1, hi + 1))
        e.salu(f"s_waitcnt vmcnt({N})")
        e.salu("s_barrier")
        if 1 <= j <= 25:
            issue(j + 7)
    e.label("L_end")
    e.salu("s_endpgm")

    hdr = f"""; Kernarg layout for this problem (48 bytes, ptrs only, base s[0:1]):
;   offset  24: d_out     shape=(8, 32, 192, 128) dtype=bfloat16 (2 bytes/elem)
; waves 0-3 compute 48 q rows each (flash attention, online softmax, lazy rescale with run-time check),
; @launch grid=(256,1,1) block=(512,1,1) lds=131072
.amdgcn_target "amdgcn-amd-amdhsa--gfx950"
.text
.globl {NAME}_kernel
.p2align 8
.type {NAME}_kernel,@function
{NAME}_kernel:
"""
    ftr = f"""
.section .rodata,"a"
.p2align 6
.amdhsa_kernel {NAME}_kernel
  .amdhsa_next_free_vgpr 256
  .amdhsa_next_free_sgpr 48
  .amdhsa_accum_offset 256
  .amdhsa_group_segment_fixed_size 0
  .amdhsa_kernarg_size 48
  .amdhsa_user_sgpr_count 2
  .amdhsa_user_sgpr_kernarg_segment_ptr 1
  .amdhsa_system_sgpr_workgroup_id_x 1
.end_amdhsa_kernel
"""
    body = "\n".join(("" if i.kind == "label" else "    ") + i.text for i in e.out)
    return hdr + body + ftr, nb

if __name__ == "__main__":
    o = Opt()
    out = f"cdna_kernels/{NAME}.s"
    for a in sys.argv[1:]:
        k, v = a.split("=")
        if k == "out":
            out = v
        else:
            setattr(o, k, type(getattr(o, k))(float(v)) if isinstance(getattr(o, k), float) else int(v))
    txt, nb = gen(o)
    open(out, "w").write(txt)
    print("wrote", out, "hazards:", nb, "lines:", txt.count("\n"))
```

```python
import sys, re, struct, math

NAME = "standalone__gqa_softmax__near_ridge"

class Opt:
    nt = 0
    rot = 1
    bar_b = 17
    T = 8.0
    prio_loader = 3
    store_nt = 0
    q_nt = 0
    stamp = 0
    nocompute = 0

def f2u(f):
    return struct.unpack("<I", struct.pack("<f", f))[0]

class I:
    __slots__ = ("text", "kind", "dst", "src", "csrc")
    def __init__(self, text, kind="other", dst=(), src=(), csrc=()):
        self.text = text; self.kind = kind
        self.dst = set(dst); self.src = set(src); self.csrc = set(csrc)

def rng(base, n):
    return list(range(base, base + n))

def vr(base, n=1):
    return f"v{base}" if n == 1 else f"v[{base}:{base+n-1}]"

class Emitter:
    def __init__(self):
        self.out = []
        self.ldsq = []
    def raw(self, s):
        self.out.append(I(s, kind="raw"))
    def label(self, s):
        self.out.append(I(s + ":", kind="label"))
    def add(self, ins):
        self.out.append(ins)
    def salu(self, t):
        self.out.append(I(t, kind="salu"))
    def valu(self, t, dst=(), src=(), trans=False):
        self.out.append(I(t, kind="trans" if trans else "valu", dst=dst, src=src))
    def mfma(self, d, a, b, c=None):
        cs = "0" if c is None else vr(c, 4)
        self.out.append(I(f"v_mfma_f32_16x16x32_bf16 {vr(d,4)}, {vr(a,4)}, {vr(b,4)}, {cs}", kind="mfma",
                          dst=rng(d, 4), src=rng(a, 4) + rng(b, 4), csrc=() if c is None else rng(c, 4)))
    def lds(self, t, tag, dst=(), src=()):
        self.out.append(I(t, kind="lds", dst=dst, src=src))
        self.ldsq.append(tag)
    def wait_lds(self, tag):
        if tag not in self.ldsq:
            return
        idx = self.ldsq.index(tag)
        n = len(self.ldsq) - 1 - idx
        assert n <= 15
        self.out.append(I(f"s_waitcnt lgkmcnt({n})", kind="wait"))
        self.ldsq = self.ldsq[idx + 1:]
    def wait_lds_all(self):
        self.out.append(I("s_waitcnt lgkmcnt(0)", kind="wait"))
        self.ldsq = []
    def nop(self, n):
        self.out.append(I(f"s_nop {n}", kind="nop", dst=(), src=()))

def states(ins):
    if ins.kind in ("raw", "label"):
        return 0
    if ins.kind == "nop":
        return int(ins.text.split()[1]) + 1
    return 1

def check_hazards(trace, name=""):
    bad = 0
    n = len(trace)
    for i, c in enumerate(trace):
        if c.kind in ("raw", "label", "nop", "wait", "salu"):
            continue
        dist = 0
        for j in range(i - 1, max(-1, i - 40), -1):
            p = trace[j]
            if dist >= 20:
                break
            need = 0
            if p.kind in ("valu", "trans", "perm"):
                if c.kind == "mfma" and (p.dst & (c.src | c.csrc)):
                    need = max(need, 2)
                if c.kind == "perm" and (p.dst & c.src):
                    need = max(need, 2)
                if c.kind == "rfl" and (p.dst & c.src):
                    need = max(need, 1)
                if p.kind == "trans" and c.kind in ("valu", "perm") and (p.dst & c.src):
                    need = max(need, 1)
            if p.kind == "mfma":
                if c.kind == "mfma":
                    if p.dst & c.src:
                        need = max(need, 8)
                    if p.dst & c.csrc and p.dst != c.csrc:
                        need = max(need, 6)
                    if p.dst & c.dst and not (p.dst == c.csrc):
                        need = max(need, 8)
                else:
                    if p.dst & (c.src | c.dst):
                        need = max(need, 8)
                    if c.kind in ("valu", "trans", "perm") and (p.csrc & c.dst):
                        need = max(need, 3)
            if p.kind == "store" and c.kind in ("valu", "trans", "perm", "lds", "mfma") and (p.src & c.dst):
                need = max(need, 2)
            if need > dist:
                print(f"HAZARD[{name}] need {need} have {dist}: '{p.text}' -> '{c.text}'", file=sys.stderr)
                bad += 1
            dist += states(p)
    return bad

O_BASE = 0
Q_BASE = 96
S_BASE = [144, 168]
KF = 192
VF = 208
AK = 224
AV = 228
NM = 236
LS = 239
TMP = 242

def Oreg(qb, db): return O_BASE + (qb * 8 + db) * 4
def Qreg(qb, s): return Q_BASE + (qb * 4 + s) * 4
def Xreg(buf, qb, kb, r=0): return S_BASE[buf] + qb * 8 + kb * 4 + r

sQ, sK, sV, sO = 12, 16, 20, 24
sW = 28
sC = 29
sT = 30
sCnt = 31
s4096, s8192 = 32, 33
sKo, sVo = 34, 35
sM0K = 36
sTmp = 37
sTmp2 = 38

SLOT = 16384
sWS = 40
sSt = 44
sStOff = 46
VST = TMP + 4

def stamp(e, o):
    if not o.stamp:
        return
    e.salu(f"{'s_memtime' if o.stamp == 3 else 's_memrealtime'} s[{sSt}:{sSt+1}]")
    e.wait_lds_all()
    e.valu(f"v_mov_b32 v{VST}, s{sSt}", dst=[VST])
    e.valu(f"v_mov_b32 v{VST+1}, s{sSt+1}", dst=[VST + 1])
    e.valu(f"v_mov_b32 v{VST+2}, 0", dst=[VST + 2])
    e.add(I(f"buffer_store_dwordx2 {vr(VST,2)}, v{VST+2}, s[{sWS}:{sWS+3}], s{sStOff} offen", kind="vmem"))
    e.salu(f"s_add_u32 s{sStOff}, s{sStOff}, 8")

def stamp_init(e, o):
    if not o.stamp:
        return
    e.salu(f"s_load_dwordx2 s[{sWS}:{sWS+1}], s[0:1], 40")
    e.salu(f"s_mov_b32 s{sWS+2}, 0x1000000")
    e.salu(f"s_mov_b32 s{sWS+3}, 0x00020000")
    e.salu(f"s_lshl_b32 s{sStOff}, s2, 3")
    e.salu(f"s_add_u32 s{sStOff}, s{sStOff}, s{sW}")
    e.salu(f"s_lshl_b32 s{sStOff}, s{sStOff}, 9")
    e.salu("s_waitcnt lgkmcnt(0)")

def k_read(e, f, uslot):
    kb, s = f // 4, f % 4
    d = KF + (f % 4) * 4
    e.lds(f"ds_read_b128 {vr(d,4)}, v{AK+s} offset:{uslot*SLOT + kb*4096}", ("K", f), dst=rng(d, 4), src=[AK + s])

def v_read(e, db, jh, uslot):
    d = VF + (db % 4) * 4 + jh * 2
    e.lds(f"ds_read_b64_tr_b16 {vr(d,2)}, v{AV+db} offset:{uslot*SLOT + 8192 + jh*4096}", ("V", db, jh),
          dst=rng(d, 2), src=[AV + db])

def softmax_ops(buf):
    ops = []
    for qb in range(3):
        X = [Xreg(buf, qb, 0) + i for i in range(8)]
        def E(i, X=X): return lambda e: e.valu(f"v_exp_f32 v{X[i]}, v{X[i]}", dst=[X[i]], src=[X[i]], trans=True)
        def A(i, X=X, qb=qb): return lambda e: e.valu(f"v_add_f32 v{LS+qb}, v{LS+qb}, v{X[i]}", dst=[LS + qb], src=[LS + qb, X[i]])
        def C(i, X=X): return lambda e: e.valu(f"v_cvt_pk_bf16_f32 v{X[i]}, v{X[2*i]}, v{X[2*i+1]}", dst=[X[i]], src=[X[2*i], X[2*i+1]])
        seq = [E(0), E(1), A(0), E(2), A(1), E(3), A(2), C(0), E(4), A(3), C(1), E(5), A(4), E(6), A(5), E(7), A(6), C(2), A(7), C(3)]
        ops += seq
    return ops

def fma_max_ops(buf):
    ops = []
    order = [(qb, kb, r) for kb in range(2) for qb in range(3) for r in range(4)]
    regs = [Xreg(buf, qb, kb, r) for (qb, kb, r) in order]
    mx = TMP
    def F(i):
        qb = order[i][0]; x = regs[i]
        return lambda e: e.valu(f"v_fma_f32 v{x}, v{x}, s{sC}, v{NM+qb}", dst=[x], src=[x, NM + qb])
    def M0():
        return lambda e: e.valu(f"v_max3_f32 v{mx}, v{regs[0]}, v{regs[1]}, v{regs[2]}", dst=[mx], src=regs[0:3])
    def M(i):
        return lambda e: e.valu(f"v_max3_f32 v{mx}, v{mx}, v{regs[i]}, v{regs[i+1]}", dst=[mx], src=[mx, regs[i], regs[i + 1]])
    def ML():
        return lambda e: e.valu(f"v_max_f32 v{mx}, v{mx}, v{regs[23]}", dst=[mx], src=[mx, regs[23]])
    ops += [F(0), F(1), F(2), F(3), M0()]
    i = 3
    nf = 4
    while i < 23:
        while nf <= min(i + 2, 23):
            ops.append(F(nf)); nf += 1
        ops.append(M(i)); i += 2
    while nf <= 23:
        ops.append(F(nf)); nf += 1
    ops.append(ML())
    return ops

def spread(n_slots, ops, lead=0):
    res = [[] for _ in range(n_slots + 1)]
    res[0] = ops[:lead]
    rest = ops[lead:]
    for k, op in enumerate(rest):
        res[1 + (k * n_slots) // len(rest)].append(op)
    return res

def phase_A(e, o, cur, nxt, uslot, do_qk=True, do_sm=True, lead=4):
    sm = softmax_ops(cur) if do_sm else []
    if not do_qk:
        for op in sm: op(e)
        return
    fill = spread(24, sm, lead=lead if do_sm else 0) if sm else [[] for _ in range(25)]
    for op in fill[0]: op(e)
    for a in range(24):
        kb, s, qb = a // 12, (a % 12) // 3, a % 3
        f = a // 3
        if a % 3 == 0:
            e.wait_lds(("K", f))
        d = Xreg(nxt, qb, kb)
        e.mfma(d, KF + (f % 4) * 4, Qreg(qb, s), None if s == 0 else d)
        if a % 3 == 2 and f + 4 < 8:
            k_read(e, f + 4, uslot)
        if do_sm and a >= 13 and a < 21:
            k = a - 13
            v_read(e, k // 2, k % 2, uslot)
        for op in fill[1 + a]: op(e)

def phase_B(e, o, cur, nxt, uslot, next_uslot, do_fma=True, barrier=True, toggle=False, rare_label=None, pre_k=True):
    fm = fma_max_ops(nxt) if do_fma else []
    fill = spread(22, fm) if fm else [[] for _ in range(23)]
    tog = []
    for b in range(24):
        db, qb = b // 3, b % 3
        if b % 3 == 0:
            e.wait_lds(("V", db, 1))
        e.mfma(Oreg(qb, db), VF + (db % 4) * 4, Xreg(cur, qb, 0), Oreg(qb, db))
        if b % 3 == 2 and db + 4 < 8:
            v_read(e, db + 4, 0, uslot)
            v_read(e, db + 4, 1, uslot)
        if toggle and b == 12:
            for s in range(4):
                e.valu(f"v_xor_b32 v{AK+s}, 0x10000, v{AK+s}", dst=[AK + s], src=[AK + s])
        if toggle and b in (13, 14):
            for d in range(4):
                dd = (b - 13) * 4 + d
                e.valu(f"v_xor_b32 v{AV+dd}, 0x10000, v{AV+dd}", dst=[AV + dd], src=[AV + dd])
        if b == o.bar_b and barrier:
            e.wait_lds_all()
            if o.stamp == 2: stamp(e, o)
            e.salu("s_barrier")
            stamp(e, o)
        if barrier and pre_k and o.bar_b <= b < o.bar_b + 4:
            k_read(e, b - o.bar_b, next_uslot)
        if b < 22:
            for op in fill[1 + b]: op(e)
        if b == 22 and do_fma:
            e.valu(f"v_cmp_lt_f32 vcc, s{sT}, v{TMP}", src=[TMP])
    if do_fma:
        e.salu(f"s_cbranch_vccnz {rare_label}")
        e.label(rare_label + "_ret")

def xlane_reduce(e, op, t, a, b):
    ins = "v_max_f32" if op == "max" else "v_add_f32"
    for swp in ("v_permlane16_swap_b32", "v_permlane32_swap_b32"):
        e.valu(f"v_mov_b32 v{a}, v{t}", dst=[a], src=[t])
        e.valu(f"v_mov_b32 v{b}, v{t}", dst=[b], src=[t])
        e.nop(1)
        e.add(I(f"{swp} v{a}, v{b}", kind="perm", dst=[a, b], src=[a, b]))
        e.nop(1)
        e.valu(f"{ins} v{t}, v{a}, v{b}", dst=[t], src=[a, b])

def rare_path(e, label, buf):
    e.label(label)
    e.nop(15)
    for qb in range(3):
        X = [Xreg(buf, qb, 0) + i for i in range(8)]
        t, a, b = TMP + 1, TMP + 2, TMP + 3
        e.valu(f"v_max3_f32 v{t}, v{X[0]}, v{X[1]}, v{X[2]}", dst=[t], src=X[0:3])
        e.valu(f"v_max3_f32 v{t}, v{t}, v{X[3]}, v{X[4]}", dst=[t], src=[t, X[3], X[4]])
        e.valu(f"v_max3_f32 v{t}, v{t}, v{X[5]}, v{X[6]}", dst=[t], src=[t, X[5], X[6]])
        e.valu(f"v_max3_f32 v{t}, v{t}, v{X[7]}, 0", dst=[t], src=[t, X[7]])
        xlane_reduce(e, "max", t, a, b)
        e.valu(f"v_sub_f32 v{NM+qb}, v{NM+qb}, v{t}", dst=[NM + qb], src=[NM + qb, t])
        for i in range(8):
            e.valu(f"v_sub_f32 v{X[i]}, v{X[i]}, v{t}", dst=[X[i]], src=[X[i], t])
        e.valu(f"v_exp_f32 v{a}, -v{t}", dst=[a], src=[t], trans=True)
        e.nop(1)
        e.valu(f"v_mul_f32 v{LS+qb}, v{LS+qb}, v{a}", dst=[LS + qb], src=[LS + qb, a])
        for db in range(8):
            for r in range(4):
                x = Oreg(qb, db) + r
                e.valu(f"v_mul_f32 v{x}, v{x}, v{a}", dst=[x], src=[x, a])
    e.nop(3)
    e.salu(f"s_branch {label}_ret")

def first_max(e, buf):
    for qb in range(3):
        X = [Xreg(buf, qb, 0) + i for i in range(8)]
        t, a, b = TMP + 1 + 3 * qb, TMP + 2 + 3 * qb, TMP + 3 + 3 * qb
        for i in range(8):
            e.valu(f"v_mul_f32 v{X[i]}, s{sC}, v{X[i]}", dst=[X[i]], src=[X[i]])
        e.valu(f"v_max3_f32 v{t}, v{X[0]}, v{X[1]}, v{X[2]}", dst=[t], src=X[0:3])
        e.valu(f"v_max3_f32 v{t}, v{t}, v{X[3]}, v{X[4]}", dst=[t], src=[t, X[3], X[4]])
        e.valu(f"v_max3_f32 v{t}, v{t}, v{X[5]}, v{X[6]}", dst=[t], src=[t, X[5], X[6]])
        e.valu(f"v_max_f32 v{t}, v{t}, v{X[7]}", dst=[t], src=[t, X[7]])
        xlane_reduce(e, "max", t, a, b)
        e.valu(f"v_sub_f32 v{NM+qb}, 0, v{t}", dst=[NM + qb], src=[t])
        for i in range(8):
            e.valu(f"v_sub_f32 v{X[i]}, v{X[i]}, v{t}", dst=[X[i]], src=[X[i], t])

def gen(o):
    e = Emitter()
    c = math.log2(math.e) / math.sqrt(128.0)
    e.salu("s_cmp_ge_u32 s2, 256")
    e.salu("s_cbranch_scc1 L_end")
    e.salu("s_load_dwordx8 s[4:11], s[0:1], 0")
    e.valu("v_lshrrev_b32 v1, 6, v0", dst=[1], src=[0])
    e.valu("v_and_b32 v0, 63, v0", dst=[0], src=[0])
    e.add(I(f"v_readfirstlane_b32 s{sW}, v1", kind="rfl", src=[1]))
    e.valu("v_and_b32 v2, 15, v0", dst=[2], src=[0])
    e.valu("v_lshrrev_b32 v3, 4, v0", dst=[3], src=[0])
    e.salu(f"s_mul_i32 s{sTmp}, s2, 49152")
    e.salu(f"s_lshl_b32 s{sTmp2}, s2, 18")
    e.salu(f"s_mov_b32 s{sQ+2}, 49152")
    e.salu(f"s_mov_b32 s{sQ+3}, 0x00020000")
    e.salu(f"s_mov_b32 s{sK+2}, 262144")
    e.salu(f"s_mov_b32 s{sK+3}, 0x00020000")
    e.salu(f"s_mov_b32 s{sV+2}, 262144")
    e.salu(f"s_mov_b32 s{sV+3}, 0x00020000")
    e.salu(f"s_mov_b32 s{sO+2}, 49152")
    e.salu(f"s_mov_b32 s{sO+3}, 0x00020000")
    e.salu(f"s_mov_b32 s{s4096}, 4096")
    e.salu(f"s_mov_b32 s{s8192}, 8192")
    stamp_init(e, o)
    stamp(e, o)
    e.salu(f"s_cmp_ge_u32 s{sW}, 4")
    e.salu("s_cbranch_scc1 L_loader")

    e.salu(f"s_mul_i32 s{sCnt}, s{sW}, {48*256}")
    e.valu("v_lshlrev_b32 v4, 8, v2", dst=[4], src=[2])
    e.valu("v_lshl_add_u32 v4, v3, 4, v4", dst=[4], src=[3, 4])
    e.valu(f"v_add_u32 v4, s{sCnt}, v4", dst=[4], src=[4])
    e.salu("s_waitcnt lgkmcnt(0)")
    e.salu(f"s_add_u32 s{sQ}, s4, s{sTmp}")
    e.salu(f"s_addc_u32 s{sQ+1}, s5, 0")
    e.salu(f"s_and_b32 s{sQ+1}, s{sQ+1}, 0xffff")
    qnt = " nt" if o.q_nt else ""
    for qb in range(3):
        so = ["0", f"s{s4096}", f"s{s8192}"][qb]
        for s in range(4):
            d = Qreg(qb, s)
            e.add(I(f"buffer_load_dwordx4 {vr(d,4)}, v4, s[{sQ}:{sQ+3}], {so} offen offset:{s*64}{qnt}", kind="vmem",
                    dst=rng(d, 4), src=[4]))
    e.salu(f"s_add_u32 s{sO}, s10, s{sTmp}")
    e.salu(f"s_addc_u32 s{sO+1}, s11, 0")
    e.salu(f"s_and_b32 s{sO+1}, s{sO+1}, 0xffff")
    e.salu(f"s_mov_b32 s{sC}, 0x{f2u(c):08x}")
    e.salu(f"s_mov_b32 s{sT}, 0x{f2u(o.T):08x}")
    VOUT = TMP + 13
    e.valu("v_and_b32 v5, 1, v3", dst=[5], src=[3])
    e.valu("v_lshrrev_b32 v6, 1, v3", dst=[6], src=[3])
    e.valu(f"v_lshlrev_b32 v{VOUT}, 8, v2", dst=[VOUT], src=[2])
    e.valu(f"v_lshl_add_u32 v{VOUT}, v5, 5, v{VOUT}", dst=[VOUT], src=[5, VOUT])
    e.valu(f"v_lshl_add_u32 v{VOUT}, v6, 4, v{VOUT}", dst=[VOUT], src=[6, VOUT])
    e.valu(f"v_add_u32 v{VOUT}, s{sCnt}, v{VOUT}", dst=[VOUT], src=[VOUT])
    e.valu("v_xor_b32 v7, v3, v2", dst=[7], src=[3, 2])
    e.valu("v_lshlrev_b32 v7, 4, v7", dst=[7], src=[7])
    e.valu("v_lshl_add_u32 v7, v2, 8, v7", dst=[7], src=[2, 7])
    e.valu("v_add_u32 v7, 0x10000, v7", dst=[7], src=[7])
    for s in range(4):
        e.valu(f"v_xor_b32 v{AK+s}, {s*64}, v7", dst=[AK + s], src=[7])
    e.valu("v_lshrrev_b32 v8, 2, v2", dst=[8], src=[2])
    e.valu("v_and_b32 v9, 3, v0", dst=[9], src=[0])
    e.valu("v_lshl_add_u32 v10, v3, 2, v8", dst=[10], src=[3, 8])
    e.valu("v_and_b32 v11, 7, v10", dst=[11], src=[10])
    e.valu("v_lshlrev_b32 v11, 5, v11", dst=[11], src=[11])
    e.valu("v_lshl_add_u32 v11, v10, 8, v11", dst=[11], src=[10, 11])
    e.valu("v_lshl_add_u32 v11, v9, 3, v11", dst=[11], src=[9, 11])
    for db in range(8):
        e.valu(f"v_xor_b32 v{AV+db}, {db*32}, v11", dst=[AV + db], src=[11])
    for i in range(96):
        e.valu(f"v_mov_b32 v{O_BASE+i}, 0", dst=[O_BASE + i])
    for qb in range(3):
        e.valu(f"v_mov_b32 v{LS+qb}, 0", dst=[LS + qb])
    if o.nocompute:
        for j in range(33):
            e.salu("s_barrier")
            if j == 0:
                e.salu("s_waitcnt vmcnt(0)")
                stamp(e, o)
        stamp(e, o)
        for qb in range(3):
            so = ["0", f"s{s4096}", f"s{s8192}"][qb]
            for ep in range(4):
                e.add(I(f"buffer_store_dwordx4 {vr(Qreg(qb,ep),4)}, v{VOUT}, s[{sO}:{sO+3}], {so} offen offset:{ep*64}", kind="store"))
        stamp(e, o)
        e.salu("s_waitcnt vmcnt(0)")
        stamp(e, o)
        e.salu("s_endpgm")
    e.salu("s_barrier")
    stamp(e, o)
    for f in range(4):
        k_read(e, f, 3)
    e.salu("s_waitcnt vmcnt(0)")
    if o.stamp:
        stamp(e, o)
        for f in range(4):
            k_read(e, f, 3)
    phase_A(e, o, cur=1, nxt=0, uslot=3, do_qk=True, do_sm=False)
    for s in range(4):
        e.valu(f"v_xor_b32 v{AK+s}, 0x10000, v{AK+s}", dst=[AK + s], src=[AK + s])
    e.wait_lds_all()
    e.salu("s_barrier")
    for f in range(4):
        k_read(e, f, 0)
    e.nop(3)
    first_max(e, 0)
    e.salu(f"s_mov_b32 s{sCnt}, 7")
    pro_end = len(e.out)
    ldsq_at_loop = list(e.ldsq)
    rares = []
    e.label("L_loop")
    for u in range(4):
        cur, nxt = u % 2, (u + 1) % 2
        phase_A(e, o, cur, nxt, u)
        lab = f"L_rare_m{u}"
        phase_B(e, o, cur, nxt, u, (u + 1) % 4, toggle=(u == 3), rare_label=lab)
        rares.append((lab, nxt))
    assert e.ldsq == ldsq_at_loop, (e.ldsq, ldsq_at_loop)
    e.salu(f"s_sub_u32 s{sCnt}, s{sCnt}, 1")
    e.salu(f"s_cmp_lg_u32 s{sCnt}, 0")
    e.salu("s_cbranch_scc1 L_loop")
    loop_end = len(e.out)
    for u in range(3):
        cur, nxt = u % 2, (u + 1) % 2
        phase_A(e, o, cur, nxt, u)
        lab = f"L_rare_t{u}"
        last = (u == 2)
        phase_B(e, o, cur, nxt, u, (u + 1) % 4, rare_label=lab, barrier=not last)
        rares.append((lab, nxt))
    cur = 1
    phase_A(e, o, cur, 0, 3, do_qk=False, do_sm=True)
    e.wait_lds_all()
    stamp(e, o)
    e.salu("s_barrier")
    stamp(e, o)
    for db in range(4):
        v_read(e, db, 0, 3); v_read(e, db, 1, 3)
    INV = TMP + 10
    for qb in range(3):
        xlane_reduce(e, "add", LS + qb, TMP + 1, TMP + 2)
    for qb in range(3):
        e.valu(f"v_rcp_f32 v{INV+qb}, v{LS+qb}", dst=[INV + qb], src=[LS + qb], trans=True)
    snt = " nt" if o.store_nt else ""
    def epi(qb, ep, quad):
        st = S_BASE[0] + quad * 4
        ops = []
        for h in range(2):
            ob = Oreg(qb, 2 * ep + h)
            for r in range(4):
                ops.append(lambda e, x=ob + r: e.valu(f"v_mul_f32 v{x}, v{x}, v{INV+qb}", dst=[x], src=[x, INV + qb]))
            ops.append(lambda e, ob=ob, h=h: e.valu(f"v_cvt_pk_bf16_f32 v{st+2*h}, v{ob}, v{ob+1}", dst=[st + 2 * h], src=[ob, ob + 1]))
            ops.append(lambda e, ob=ob, h=h: e.valu(f"v_cvt_pk_bf16_f32 v{st+2*h+1}, v{ob+2}, v{ob+3}", dst=[st + 2 * h + 1], src=[ob + 2, ob + 3]))
        ops.append(lambda e: e.nop(1))
        ops.append(lambda e: e.add(I(f"v_permlane16_swap_b32 v{st}, v{st+2}", kind="perm", dst=[st, st + 2], src=[st, st + 2])))
        ops.append(lambda e: e.add(I(f"v_permlane16_swap_b32 v{st+1}, v{st+3}", kind="perm", dst=[st + 1, st + 3], src=[st + 1, st + 3])))
        so = ["0", f"s{s4096}", f"s{s8192}"][qb]
        ops.append(lambda e: e.add(I(f"buffer_store_dwordx4 {vr(st,4)}, v{VOUT}, s[{sO}:{sO+3}], {so} offen offset:{ep*64}{snt}",
                                     kind="store", src=rng(st, 4) + [VOUT])))
        return ops
    pend = []
    quad = 0
    for b in range(24):
        db, qb = b // 3, b % 3
        if b % 3 == 0:
            e.wait_lds(("V", db, 1))
        e.mfma(Oreg(qb, db), VF + (db % 4) * 4, Xreg(cur, qb, 0), Oreg(qb, db))
        if b % 3 == 2 and db + 4 < 8:
            v_read(e, db + 4, 0, 3); v_read(e, db + 4, 1, 3)
        if b >= 8 and (b - 8) % 6 == 0:
            ep = (b - 8) // 6
            for q in range(3):
                pend += epi(q, ep, quad); quad = (quad + 1) % 6
        k = 0
        while pend and k < 7:
            pend.pop(0)(e); k += 1
    for op in pend: op(e)
    e.nop(7)
    for q in range(3):
        for op in epi(q, 3, quad): op(e)
        quad = (quad + 1) % 6
    stamp(e, o)
    if o.stamp:
        e.salu("s_waitcnt vmcnt(0)")
        stamp(e, o)
    e.salu("s_endpgm")
    main_end = len(e.out)

    tr = e.out[:loop_end] + e.out[pro_end:loop_end] + e.out[loop_end:main_end]
    nb = check_hazards(tr, "main")

    for lab, buf in rares:
        st = len(e.out)
        rare_path(e, lab, buf)
        nb += check_hazards(e.out[st:], lab)

    e.label("L_loader")
    e.salu(f"s_setprio {o.prio_loader}")
    e.salu(f"s_sub_u32 s{sW}, s{sW}, 4")
    e.salu(f"s_lshl_b32 s{sCnt}, s{sW}, 3")
    e.valu(f"v_add_u32 v4, s{sCnt}, v3", dst=[4], src=[3])
    e.valu("v_add_u32 v5, 4, v4", dst=[5], src=[4])
    e.valu("v_and_b32 v6, 15, v4")
    e.valu("v_xor_b32 v6, v6, v2")
    e.valu("v_lshlrev_b32 v6, 4, v6")
    e.valu("v_lshl_add_u32 v10, v4, 8, v6")
    e.valu("v_and_b32 v6, 15, v5")
    e.valu("v_xor_b32 v6, v6, v2")
    e.valu("v_lshlrev_b32 v6, 4, v6")
    e.valu("v_lshl_add_u32 v11, v4, 8, v6")
    e.valu("v_and_b32 v6, 7, v4")
    e.valu("v_lshlrev_b32 v6, 1, v6")
    e.valu("v_xor_b32 v6, v6, v2")
    e.valu("v_lshlrev_b32 v6, 4, v6")
    e.valu("v_lshl_add_u32 v12, v4, 8, v6")
    e.valu("v_and_b32 v6, 7, v5")
    e.valu("v_lshlrev_b32 v6, 1, v6")
    e.valu("v_xor_b32 v6, v6, v2")
    e.valu("v_lshlrev_b32 v6, 4, v6")
    e.valu("v_lshl_add_u32 v13, v4, 8, v6")
    e.salu(f"s_lshl_b32 s{sM0K}, s{sW}, 11")
    if o.rot:
        e.salu(f"s_mul_i32 s{sKo}, s2, {o.rot}")
        e.salu(f"s_and_b32 s{sKo}, s{sKo}, 31")
        e.salu(f"s_lshl_b32 s{sKo}, s{sKo}, 13")
    else:
        e.salu(f"s_mov_b32 s{sKo}, 0")
    e.salu("s_waitcnt lgkmcnt(0)")
    e.salu(f"s_add_u32 s{sK}, s6, s{sTmp2}")
    e.salu(f"s_addc_u32 s{sK+1}, s7, 0")
    e.salu(f"s_and_b32 s{sK+1}, s{sK+1}, 0xffff")
    e.salu(f"s_add_u32 s{sV}, s8, s{sTmp2}")
    e.salu(f"s_addc_u32 s{sV+1}, s9, 0")
    e.salu(f"s_and_b32 s{sV+1}, s{sV+1}, 0xffff")
    nt = " nt" if o.nt else ""
    lst = [0]
    def lstamp():
        if not o.stamp: return
        e.salu(f"s_memrealtime s[{sSt}:{sSt+1}]")
        e.salu("s_waitcnt lgkmcnt(0)")
        e.salu(f"s_mov_b32 s{48+lst[0]}, s{sSt}")
        lst[0] += 1
    lstamp()
    def issue(j):
        slot = (j - 1) % 8
        if j >= 1:
            e.salu(f"s_mov_b32 s{sVo}, s{sKo}")
            if j <= 31:
                e.salu(f"s_add_u32 s{sKo}, s{sKo}, 8192")
                e.salu(f"s_and_b32 s{sKo}, s{sKo}, 0x3ffff")
        if j <= 31:
            e.salu(f"s_add_u32 m0, s{sM0K}, {slot*SLOT}")
            e.nop(0)
            e.add(I(f"buffer_load_dwordx4 v10, s[{sK}:{sK+3}], s{sKo} offen{nt} lds", kind="vmem"))
            e.add(I(f"buffer_load_dwordx4 v11, s[{sK}:{sK+3}], s{sKo} offen offset:1024{nt} lds", kind="vmem"))
        if j >= 1:
            e.salu(f"s_add_u32 m0, s{sM0K}, {slot*SLOT + 8192}")
            e.nop(0)
            e.add(I(f"buffer_load_dwordx4 v12, s[{sV}:{sV+3}], s{sVo} offen{nt} lds", kind="vmem"))
            e.add(I(f"buffer_load_dwordx4 v13, s[{sV}:{sV+3}], s{sVo} offen offset:1024{nt} lds", kind="vmem"))
    def nins(j): return 2 if j in (0, 32) else 4
    for j in range(8):
        issue(j)
    lstamp()
    for j in range(33):
        hi = min(32, max(7, j + 6))
        N = sum(nins(i) for i in range(j + 1, hi + 1))
        e.salu(f"s_waitcnt vmcnt({N})")
        lstamp()
        e.salu("s_barrier")
        if 1 <= j <= 25:
            issue(j + 7)
    if o.stamp:
        e.valu(f"v_mov_b32 v{VST+1}, s{sSt+1}")
        e.valu(f"v_mov_b32 v{VST+2}, 0")
        for i in range(lst[0]):
            e.valu(f"v_mov_b32 v{VST}, s{48+i}")
            e.add(I(f"buffer_store_dwordx2 {vr(VST,2)}, v{VST+2}, s[{sWS}:{sWS+3}], s{sStOff} offen offset:{i*8}", kind="vmem"))
            e.nop(1)
    e.label("L_end")
    e.salu("s_endpgm")

    hdr = f"""; Kernarg layout for this problem (48 bytes, ptrs only, base s[0:1]):
;   offset  24: d_out     shape=(8, 32, 192, 128) dtype=bfloat16 (2 bytes/elem)
; waves 0-3 compute 48 q rows each (flash attention, online softmax, lazy rescale with run-time check),
; @launch grid=(256,1,1) block=(512,1,1) lds=131072
.amdgcn_target "amdgcn-amd-amdhsa--gfx950"
.text
.globl {NAME}_kernel
.p2align 8
.type {NAME}_kernel,@function
{NAME}_kernel:
"""
    ftr = f"""
.section .rodata,"a"
.p2align 6
.amdhsa_kernel {NAME}_kernel
  .amdhsa_next_free_vgpr 256
  .amdhsa_next_free_sgpr 96
  .amdhsa_accum_offset 256
  .amdhsa_group_segment_fixed_size 0
  .amdhsa_kernarg_size 48
  .amdhsa_user_sgpr_count 2
  .amdhsa_user_sgpr_kernarg_segment_ptr 1
  .amdhsa_system_sgpr_workgroup_id_x 1
.end_amdhsa_kernel
"""
    body = "\n".join(("" if i.kind == "label" else "    ") + i.text for i in e.out)
    return hdr + body + ftr, nb

if __name__ == "__main__":
    o = Opt()
    out = f"cdna_kernels/{NAME}.s"
    for a in sys.argv[1:]:
        k, v = a.split("=")
        if k == "out":
            out = v
        else:
            setattr(o, k, type(getattr(o, k))(float(v)) if isinstance(getattr(o, k), float) else int(v))
    txt, nb = gen(o)
    open(out, "w").write(txt)
    print("wrote", out, "hazards:", nb, "lines:", txt.count("\n"))
```

```python
import re
VOP3_ONLY = ("v_fma_f32", "v_max3_f32", "v_min3_u32", "v_cvt_pk_bf16_f32", "v_lshl_add_u32", "v_bfe_u32", "v_mbcnt_lo_u32_b32",
             "v_mbcnt_hi_u32_b32", "v_mul_lo_u32", "v_or3_b32", "v_pk_mul_f32", "v_and_or_b32", "v_add3_u32", "v_med3_f32", "v_perm_b32", "v_readlane_b32")
FLEX = ("v_exp_f32", "v_add_u32", "v_min_u32", "v_max_f32", "v_mul_f32", "v_sub_f32", "v_mov_b32", "v_rcp_f32", "v_add_f32",
        "v_and_b32", "v_lshlrev_b32", "v_lshrrev_b32", "v_xor_b32", "v_sub_u32", "v_subrev_u32", "v_mul_u32_u24", "v_or_b32",
        "v_cmp_le_u32", "v_cmp_lt_f32", "v_cmp_gt_u32", "v_cmp_ne_u32")
def has_literal(ops):
    for t in re.split(r"[,\s]+", ops):
        if re.fullmatch(r"-?(0x[0-9a-fA-F]+|\d+)", t):
            v = int(t, 0)
            if v < -16 or v > 64:
                return True
    return False
def classify(ins):
    if ins.kind in ("raw", "label"):
        return 0
    t = ins.text.strip()
    m = t.split(None, 1)
    op = m[0]; ops = m[1] if len(m) > 1 else ""
    if ins.kind in ("mfma", "lds", "vmem", "store") or op.startswith(("ds_", "buffer_", "v_mfma", "s_load", "s_mem")):
        return 8
    if op.startswith("s_"):
        if op in ("s_waitcnt", "s_nop", "s_barrier", "s_sleep", "s_setprio", "s_endpgm") or op.startswith(("s_cbranch", "s_branch")):
            return 4
        return 8 if has_literal(ops) else 4
    if op in VOP3_ONLY:
        return 8
    if op in FLEX:
        if has_literal(ops):
            return 8
        if "-v" in ops or "abs(" in ops:
            return 8
        if op.startswith("v_cmp") and not ops.startswith("vcc"):
            return 8
        return "flex"
    return 4
def align_pass(out, start, end, base_mis=0):
    cls = [classify(i) for i in out]
    off = base_mis
    for i in range(start):
        c = cls[i]
        off += 4 if c == "flex" else c
    idx = [i for i in range(start, end) if cls[i] != 0]
    for k, i in enumerate(idx):
        c = cls[i]
        if c == "flex":
            if off % 8 == 4:
                size = 4
            else:
                n4 = 0; size = 8
                for j in idx[k + 1:]:
                    if cls[j] == 4: n4 += 1
                    elif cls[j] == "flex": break
                    else:
                        if n4 % 2 == 1: size = 4
                        break
            op, rest = out[i].text.split(None, 1)
            out[i].text = f"{op}_e{'32' if size == 4 else '64'} {rest}"
            off += size
        else:
            off += c
    return off
```

```python
import sys, re, struct, math

NAME = "standalone__gqa_softmax__near_ridge"

class Opt:
    nt = 0
    rot = 1
    bar_b = 17
    T = 8.0
    prio_loader = 3
    store_nt = 0
    q_nt = 0
    stamp = 0
    nocompute = 0
    qfirst = 1
    noload = 0
    remap = 0
    touch_o = 0
    tstride = 1
    pol = 0

def f2u(f):
    return struct.unpack("<I", struct.pack("<f", f))[0]

class I:
    __slots__ = ("text", "kind", "dst", "src", "csrc")
    def __init__(self, text, kind="other", dst=(), src=(), csrc=()):
        self.text = text; self.kind = kind
        self.dst = set(dst); self.src = set(src); self.csrc = set(csrc)

def rng(base, n):
    return list(range(base, base + n))

def vr(base, n=1):
    return f"v{base}" if n == 1 else f"v[{base}:{base+n-1}]"

class Emitter:
    def __init__(self):
        self.out = []
        self.ldsq = []
    def raw(self, s):
        self.out.append(I(s, kind="raw"))
    def label(self, s):
        self.out.append(I(s + ":", kind="label"))
    def add(self, ins):
        self.out.append(ins)
    def salu(self, t):
        self.out.append(I(t, kind="salu"))
    def valu(self, t, dst=(), src=(), trans=False):
        self.out.append(I(t, kind="trans" if trans else "valu", dst=dst, src=src))
    def mfma(self, d, a, b, c=None):
        cs = "0" if c is None else vr(c, 4)
        self.out.append(I(f"v_mfma_f32_16x16x32_bf16 {vr(d,4)}, {vr(a,4)}, {vr(b,4)}, {cs}", kind="mfma",
                          dst=rng(d, 4), src=rng(a, 4) + rng(b, 4), csrc=() if c is None else rng(c, 4)))
    def lds(self, t, tag, dst=(), src=()):
        self.out.append(I(t, kind="lds", dst=dst, src=src))
        self.ldsq.append(tag)
    def wait_lds(self, tag):
        if tag not in self.ldsq:
            return
        idx = self.ldsq.index(tag)
        n = len(self.ldsq) - 1 - idx
        assert n <= 15
        self.out.append(I(f"s_waitcnt lgkmcnt({n})", kind="wait"))
        self.ldsq = self.ldsq[idx + 1:]
    def wait_lds_all(self):
        self.out.append(I("s_waitcnt lgkmcnt(0)", kind="wait"))
        self.ldsq = []
    def nop(self, n):
        self.out.append(I(f"s_nop {n}", kind="nop", dst=(), src=()))

def states(ins):
    if ins.kind in ("raw", "label"):
        return 0
    if ins.kind == "nop":
        return int(ins.text.split()[1]) + 1
    return 1

def check_hazards(trace, name=""):
    bad = 0
    n = len(trace)
    for i, c in enumerate(trace):
        if c.kind in ("raw", "label", "nop", "wait", "salu"):
            continue
        dist = 0
        for j in range(i - 1, max(-1, i - 40), -1):
            p = trace[j]
            if dist >= 20:
                break
            need = 0
            if p.kind in ("valu", "trans", "perm"):
                if c.kind == "mfma" and (p.dst & (c.src | c.csrc)):
                    need = max(need, 2)
                if c.kind == "perm" and (p.dst & c.src):
                    need = max(need, 2)
                if c.kind == "rfl" and (p.dst & c.src):
                    need = max(need, 1)
                if p.kind == "trans" and c.kind in ("valu", "perm") and (p.dst & c.src):
                    need = max(need, 1)
            if p.kind == "mfma":
                if c.kind == "mfma":
                    if p.dst & c.src:
                        need = max(need, 8)
                    if p.dst & c.csrc and p.dst != c.csrc:
                        need = max(need, 6)
                    if p.dst & c.dst and not (p.dst == c.csrc):
                        need = max(need, 8)
                else:
                    if p.dst & (c.src | c.dst):
                        need = max(need, 8)
                    if c.kind in ("valu", "trans", "perm") and (p.csrc & c.dst):
                        need = max(need, 3)
            if p.kind == "store" and c.kind in ("valu", "trans", "perm", "lds", "mfma") and (p.src & c.dst):
                need = max(need, 2)
            if need > dist:
                print(f"HAZARD[{name}] need {need} have {dist}: '{p.text}' -> '{c.text}'", file=sys.stderr)
                bad += 1
            dist += states(p)
    return bad

O_BASE = 0
Q_BASE = 96
S_BASE = [144, 168]
KF = 192
VF = 208
AK = 224
AV = 228
NM = 236
LS = 239
TMP = 242

def Oreg(qb, db): return O_BASE + (qb * 8 + db) * 4
def Qreg(qb, s): return Q_BASE + (qb * 4 + s) * 4
def Xreg(buf, qb, kb, r=0): return S_BASE[buf] + qb * 8 + kb * 4 + r

sQ, sK, sV, sO = 12, 16, 20, 24
sW = 28
sC = 29
sT = 30
sCnt = 31
s4096, s8192 = 32, 33
sKo, sVo = 34, 35
sM0K = 36
sTmp = 37
sTmp2 = 38

SLOT = 16384
sWS = 40
sSt = 44
sStOff = 46
VST = TMP + 4

dbg_n = [0]
def stamp(e, o, force=False):
    if not o.stamp:
        return
    if o.stamp == 5 and not force:
        return
    if o.stamp == 4:
        n = dbg_n[0]; dbg_n[0] += 1
        slot = {0: 0, 1: 1, 2: 2, 10: 3, 12: 4}.get(n)
        if slot is None:
            return
        e.salu(f"s_memrealtime s[{sSt}:{sSt+1}]")
        e.wait_lds_all()
        e.salu(f"s_mov_b32 s{48+slot}, s{sSt}")
        if n in (0, 12):
            e.salu(f"s_memtime s[{sSt}:{sSt+1}]")
            e.wait_lds_all()
            e.salu(f"s_mov_b32 s{56 + (n != 0)}, s{sSt}")
        if n == 12:
            e.salu(f"s_and_b32 s{sSt}, s2, 127")
            e.salu(f"s_or_b32 s{sSt}, s{sSt}, s{sW}")
            e.salu(f"s_cmp_lg_u32 s{sSt}, 0")
            e.salu("s_cbranch_scc1 L_dbgskip")
            e.salu(f"s_lshr_b32 s{sSt}, s2, 7")
            e.salu(f"s_lshl_b32 s{sSt}, s{sSt}, 5")
            e.valu(f"v_mov_b32 v{VST+2}, 0", dst=[VST + 2])
            for k in range(1, 5):
                e.salu(f"s_sub_u32 s{sSt+1}, s{48+k}, s48")
                e.valu(f"v_mov_b32 v{VST}, s{sSt+1}", dst=[VST])
                e.add(I(f"buffer_store_dword v{VST}, v{VST+2}, s[{sWS}:{sWS+3}], s{sSt} offen offset:{(k-1)*4}", kind="vmem"))
            e.salu(f"s_sub_u32 s{sSt+1}, s57, s56")
            e.valu(f"v_mov_b32 v{VST}, s{sSt+1}", dst=[VST])
            e.add(I(f"buffer_store_dword v{VST}, v{VST+2}, s[{sWS}:{sWS+3}], s{sSt} offen offset:16", kind="vmem"))
            e.valu(f"v_mov_b32 v{VST}, s48", dst=[VST])
            e.add(I(f"buffer_store_dword v{VST}, v{VST+2}, s[{sWS}:{sWS+3}], s{sSt} offen offset:20", kind="vmem"))
            e.label("L_dbgskip")
        return
    e.salu(f"{'s_memtime' if o.stamp in (3, 5) else 's_memrealtime'} s[{sSt}:{sSt+1}]")
    e.wait_lds_all()
    e.valu(f"v_mov_b32 v{VST}, s{sSt}", dst=[VST])
    e.valu(f"v_mov_b32 v{VST+1}, s{sSt+1}", dst=[VST + 1])
    e.valu(f"v_mov_b32 v{VST+2}, 0", dst=[VST + 2])
    e.add(I(f"buffer_store_dwordx2 {vr(VST,2)}, v{VST+2}, s[{sWS}:{sWS+3}], s{sStOff} offen", kind="vmem"))
    e.salu(f"s_add_u32 s{sStOff}, s{sStOff}, 8")

def stamp_init(e, o):
    if not o.stamp:
        return
    e.salu(f"s_load_dwordx2 s[{sWS}:{sWS+1}], s[0:1], {32 if o.stamp == 4 else 40}")
    e.salu(f"s_mov_b32 s{sWS+2}, {256 if o.stamp == 4 else 0x1000000}")
    e.salu(f"s_mov_b32 s{sWS+3}, 0x00020000")
    e.salu(f"s_lshl_b32 s{sStOff}, s2, 3")
    e.salu(f"s_add_u32 s{sStOff}, s{sStOff}, s{sW}")
    e.salu(f"s_lshl_b32 s{sStOff}, s{sStOff}, 9")
    e.salu("s_waitcnt lgkmcnt(0)")

def k_read(e, f, uslot):
    kb, s = f // 4, f % 4
    d = KF + (f % 4) * 4
    e.lds(f"ds_read_b128 {vr(d,4)}, v{AK+s} offset:{uslot*SLOT + kb*4096}", ("K", f), dst=rng(d, 4), src=[AK + s])

def v_read(e, db, jh, uslot):
    d = VF + (db % 4) * 4 + jh * 2
    e.lds(f"ds_read_b64_tr_b16 {vr(d,2)}, v{AV+db} offset:{uslot*SLOT + 8192 + jh*4096}", ("V", db, jh),
          dst=rng(d, 2), src=[AV + db])

def softmax_ops(buf):
    ops = []
    for qb in range(3):
        X = [Xreg(buf, qb, 0) + i for i in range(8)]
        def E(i, X=X): return lambda e: e.valu(f"v_exp_f32 v{X[i]}, v{X[i]}", dst=[X[i]], src=[X[i]], trans=True)
        def A(i, X=X, qb=qb): return lambda e: e.valu(f"v_add_f32 v{LS+qb}, v{LS+qb}, v{X[i]}", dst=[LS + qb], src=[LS + qb, X[i]])
        def C(i, X=X): return lambda e: e.valu(f"v_cvt_pk_bf16_f32 v{X[i]}, v{X[2*i]}, v{X[2*i+1]}", dst=[X[i]], src=[X[2*i], X[2*i+1]])
        seq = [E(0), E(1), A(0), E(2), A(1), E(3), A(2), C(0), E(4), A(3), C(1), E(5), A(4), E(6), A(5), E(7), A(6), C(2), A(7), C(3)]
        ops += seq
    return ops

def fma_max_ops(buf):
    ops = []
    order = [(qb, kb, r) for kb in range(2) for qb in range(3) for r in range(4)]
    regs = [Xreg(buf, qb, kb, r) for (qb, kb, r) in order]
    mx = TMP
    def F(i):
        qb = order[i][0]; x = regs[i]
        return lambda e: e.valu(f"v_fma_f32 v{x}, v{x}, s{sC}, v{NM+qb}", dst=[x], src=[x, NM + qb])
    def M0():
        return lambda e: e.valu(f"v_max3_f32 v{mx}, v{regs[0]}, v{regs[1]}, v{regs[2]}", dst=[mx], src=regs[0:3])
    def M(i):
        return lambda e: e.valu(f"v_max3_f32 v{mx}, v{mx}, v{regs[i]}, v{regs[i+1]}", dst=[mx], src=[mx, regs[i], regs[i + 1]])
    def ML():
        return lambda e: e.valu(f"v_max_f32 v{mx}, v{mx}, v{regs[23]}", dst=[mx], src=[mx, regs[23]])
    ops += [F(0), F(1), F(2), F(3), M0()]
    i = 3
    nf = 4
    while i < 23:
        while nf <= min(i + 2, 23):
            ops.append(F(nf)); nf += 1
        ops.append(M(i)); i += 2
    while nf <= 23:
        ops.append(F(nf)); nf += 1
    ops.append(ML())
    return ops

def spread(n_slots, ops, lead=0):
    res = [[] for _ in range(n_slots + 1)]
    res[0] = ops[:lead]
    rest = ops[lead:]
    for k, op in enumerate(rest):
        res[1 + (k * n_slots) // len(rest)].append(op)
    return res

def phase_A(e, o, cur, nxt, uslot, do_qk=True, do_sm=True, lead=4):
    sm = softmax_ops(cur) if do_sm else []
    if not do_qk:
        for op in sm: op(e)
        return
    fill = spread(24, sm, lead=lead if do_sm else 0) if sm else [[] for _ in range(25)]
    for op in fill[0]: op(e)
    for a in range(24):
        kb, s, qb = a // 12, (a % 12) // 3, a % 3
        f = a // 3
        if a % 3 == 0:
            e.wait_lds(("K", f))
        d = Xreg(nxt, qb, kb)
        e.mfma(d, KF + (f % 4) * 4, Qreg(qb, s), None if s == 0 else d)
        if a % 3 == 2 and f + 4 < 8:
            k_read(e, f + 4, uslot)
        if do_sm and a >= 13 and a < 21:
            k = a - 13
            v_read(e, k // 2, k % 2, uslot)
        for op in fill[1 + a]: op(e)

def phase_B(e, o, cur, nxt, uslot, next_uslot, do_fma=True, barrier=True, toggle=False, rare_label=None, pre_k=True):
    fm = fma_max_ops(nxt) if do_fma else []
    fill = spread(22, fm) if fm else [[] for _ in range(23)]
    tog = []
    for b in range(24):
        db, qb = b // 3, b % 3
        if b % 3 == 0:
            e.wait_lds(("V", db, 1))
        e.mfma(Oreg(qb, db), VF + (db % 4) * 4, Xreg(cur, qb, 0), Oreg(qb, db))
        if b % 3 == 2 and db + 4 < 8:
            v_read(e, db + 4, 0, uslot)
            v_read(e, db + 4, 1, uslot)
        if toggle and b == 12:
            for s in range(4):
                e.valu(f"v_xor_b32 v{AK+s}, 0x10000, v{AK+s}", dst=[AK + s], src=[AK + s])
        if toggle and b in (13, 14):
            for d in range(4):
                dd = (b - 13) * 4 + d
                e.valu(f"v_xor_b32 v{AV+dd}, 0x10000, v{AV+dd}", dst=[AV + dd], src=[AV + dd])
        if b == o.bar_b and barrier:
            e.wait_lds_all()
            if o.stamp == 2: stamp(e, o)
            e.salu("s_barrier")
            stamp(e, o)
        if barrier and pre_k and o.bar_b <= b < o.bar_b + 4:
            k_read(e, b - o.bar_b, next_uslot)
        if b < 22:
            for op in fill[1 + b]: op(e)
        if b == 22 and do_fma:
            e.valu(f"v_cmp_lt_f32 vcc, s{sT}, v{TMP}", src=[TMP])
    if do_fma:
        e.salu(f"s_cbranch_vccnz {rare_label}")
        e.label(rare_label + "_ret")

def xlane_reduce(e, op, t, a, b):
    ins = "v_max_f32" if op == "max" else "v_add_f32"
    for swp in ("v_permlane16_swap_b32", "v_permlane32_swap_b32"):
        e.valu(f"v_mov_b32 v{a}, v{t}", dst=[a], src=[t])
        e.valu(f"v_mov_b32 v{b}, v{t}", dst=[b], src=[t])
        e.nop(1)
        e.add(I(f"{swp} v{a}, v{b}", kind="perm", dst=[a, b], src=[a, b]))
        e.nop(1)
        e.valu(f"{ins} v{t}, v{a}, v{b}", dst=[t], src=[a, b])

def rare_path(e, label, buf):
    e.label(label)
    e.nop(15)
    for qb in range(3):
        X = [Xreg(buf, qb, 0) + i for i in range(8)]
        t, a, b = TMP + 1, TMP + 2, TMP + 3
        e.valu(f"v_max3_f32 v{t}, v{X[0]}, v{X[1]}, v{X[2]}", dst=[t], src=X[0:3])
        e.valu(f"v_max3_f32 v{t}, v{t}, v{X[3]}, v{X[4]}", dst=[t], src=[t, X[3], X[4]])
        e.valu(f"v_max3_f32 v{t}, v{t}, v{X[5]}, v{X[6]}", dst=[t], src=[t, X[5], X[6]])
        e.valu(f"v_max3_f32 v{t}, v{t}, v{X[7]}, 0", dst=[t], src=[t, X[7]])
        xlane_reduce(e, "max", t, a, b)
        e.valu(f"v_sub_f32 v{NM+qb}, v{NM+qb}, v{t}", dst=[NM + qb], src=[NM + qb, t])
        for i in range(8):
            e.valu(f"v_sub_f32 v{X[i]}, v{X[i]}, v{t}", dst=[X[i]], src=[X[i], t])
        e.valu(f"v_exp_f32 v{a}, -v{t}", dst=[a], src=[t], trans=True)
        e.nop(1)
        e.valu(f"v_mul_f32 v{LS+qb}, v{LS+qb}, v{a}", dst=[LS + qb], src=[LS + qb, a])
        for db in range(8):
            for r in range(4):
                x = Oreg(qb, db) + r
                e.valu(f"v_mul_f32 v{x}, v{x}, v{a}", dst=[x], src=[x, a])
    e.nop(3)
    e.salu(f"s_branch {label}_ret")

def first_max(e, buf):
    for qb in range(3):
        X = [Xreg(buf, qb, 0) + i for i in range(8)]
        t, a, b = TMP + 1 + 3 * qb, TMP + 2 + 3 * qb, TMP + 3 + 3 * qb
        for i in range(8):
            e.valu(f"v_mul_f32 v{X[i]}, s{sC}, v{X[i]}", dst=[X[i]], src=[X[i]])
        e.valu(f"v_max3_f32 v{t}, v{X[0]}, v{X[1]}, v{X[2]}", dst=[t], src=X[0:3])
        e.valu(f"v_max3_f32 v{t}, v{t}, v{X[3]}, v{X[4]}", dst=[t], src=[t, X[3], X[4]])
        e.valu(f"v_max3_f32 v{t}, v{t}, v{X[5]}, v{X[6]}", dst=[t], src=[t, X[5], X[6]])
        e.valu(f"v_max_f32 v{t}, v{t}, v{X[7]}", dst=[t], src=[t, X[7]])
        xlane_reduce(e, "max", t, a, b)
        e.valu(f"v_sub_f32 v{NM+qb}, 0, v{t}", dst=[NM + qb], src=[t])
        for i in range(8):
            e.valu(f"v_sub_f32 v{X[i]}, v{X[i]}, v{t}", dst=[X[i]], src=[X[i], t])

def gen(o):
    e = Emitter()
    c = math.log2(math.e) / math.sqrt(128.0)
    e.salu("s_cmp_ge_u32 s2, 256")
    e.salu("s_cbranch_scc1 L_end")
    e.salu("s_load_dwordx8 s[4:11], s[0:1], 0")
    if o.remap:
        e.salu("s_and_b32 s3, s2, 7")
        e.salu("s_lshl_b32 s3, s3, 5")
        e.salu("s_lshr_b32 s2, s2, 3")
        e.salu("s_or_b32 s2, s2, s3")
    e.valu("v_lshrrev_b32 v1, 6, v0", dst=[1], src=[0])
    e.valu("v_and_b32 v0, 63, v0", dst=[0], src=[0])
    e.add(I(f"v_readfirstlane_b32 s{sW}, v1", kind="rfl", src=[1]))
    e.valu("v_and_b32 v2, 15, v0", dst=[2], src=[0])
    e.valu("v_lshrrev_b32 v3, 4, v0", dst=[3], src=[0])
    e.salu(f"s_mul_i32 s{sTmp}, s2, 49152")
    e.salu(f"s_lshl_b32 s{sTmp2}, s2, 18")
    e.salu(f"s_mov_b32 s{sQ+2}, 49152")
    e.salu(f"s_mov_b32 s{sQ+3}, 0x00020000")
    e.salu(f"s_mov_b32 s{sK+2}, 262144")
    e.salu(f"s_mov_b32 s{sK+3}, 0x00020000")
    e.salu(f"s_mov_b32 s{sV+2}, 262144")
    e.salu(f"s_mov_b32 s{sV+3}, 0x00020000")
    e.salu(f"s_mov_b32 s{sO+2}, 49152")
    e.salu(f"s_mov_b32 s{sO+3}, 0x00020000")
    e.salu(f"s_mov_b32 s{s4096}, 4096")
    e.salu(f"s_mov_b32 s{s8192}, 8192")
    stamp_init(e, o)
    stamp(e, o)
    e.salu(f"s_cmp_ge_u32 s{sW}, 4")
    e.salu("s_cbranch_scc1 L_loader")

    e.salu(f"s_mul_i32 s{sCnt}, s{sW}, {48*256}")
    e.valu("v_lshlrev_b32 v4, 8, v2", dst=[4], src=[2])
    e.valu("v_lshl_add_u32 v4, v3, 4, v4", dst=[4], src=[3, 4])
    e.valu(f"v_add_u32 v4, s{sCnt}, v4", dst=[4], src=[4])
    e.salu("s_waitcnt lgkmcnt(0)")
    e.salu(f"s_add_u32 s{sQ}, s4, s{sTmp}")
    e.salu(f"s_addc_u32 s{sQ+1}, s5, 0")
    e.salu(f"s_and_b32 s{sQ+1}, s{sQ+1}, 0xffff")
    e.salu(f"s_add_u32 s{sO}, s10, s{sTmp}")
    e.salu(f"s_addc_u32 s{sO+1}, s11, 0")
    e.salu(f"s_and_b32 s{sO+1}, s{sO+1}, 0xffff")
    if o.touch_o:
        e.add(I(f"buffer_load_dword v{TMP+9}, v4, s[{sO}:{sO+3}], 0 offen", kind="vmem", dst=[TMP + 9], src=[4]))
    qnt = " nt" if o.q_nt else ""
    for qb in range(3):
        so = ["0", f"s{s4096}", f"s{s8192}"][qb]
        for s in range(4):
            d = Qreg(qb, s)
            e.add(I(f"buffer_load_dwordx4 {vr(d,4)}, v4, s[{sQ}:{sQ+3}], {so} offen offset:{s*64}{qnt}", kind="vmem",
                    dst=rng(d, 4), src=[4]))
    if o.qfirst:
        e.salu("s_barrier")
    e.salu(f"s_mov_b32 s{sC}, 0x{f2u(c):08x}")
    e.salu(f"s_mov_b32 s{sT}, 0x{f2u(o.T):08x}")
    VOUT = TMP + 13
    e.valu("v_and_b32 v5, 1, v3", dst=[5], src=[3])
    e.valu("v_lshrrev_b32 v6, 1, v3", dst=[6], src=[3])
    e.valu(f"v_lshlrev_b32 v{VOUT}, 8, v2", dst=[VOUT], src=[2])
    e.valu(f"v_lshl_add_u32 v{VOUT}, v5, 5, v{VOUT}", dst=[VOUT], src=[5, VOUT])
    e.valu(f"v_lshl_add_u32 v{VOUT}, v6, 4, v{VOUT}", dst=[VOUT], src=[6, VOUT])
    e.valu(f"v_add_u32 v{VOUT}, s{sCnt}, v{VOUT}", dst=[VOUT], src=[VOUT])
    e.valu("v_xor_b32 v7, v3, v2", dst=[7], src=[3, 2])
    e.valu("v_lshlrev_b32 v7, 4, v7", dst=[7], src=[7])
    e.valu("v_lshl_add_u32 v7, v2, 8, v7", dst=[7], src=[2, 7])
    e.valu("v_add_u32 v7, 0x10000, v7", dst=[7], src=[7])
    for s in range(4):
        e.valu(f"v_xor_b32 v{AK+s}, {s*64}, v7", dst=[AK + s], src=[7])
    e.valu("v_lshrrev_b32 v8, 2, v2", dst=[8], src=[2])
    e.valu("v_and_b32 v9, 3, v0", dst=[9], src=[0])
    e.valu("v_lshl_add_u32 v10, v3, 2, v8", dst=[10], src=[3, 8])
    e.valu("v_and_b32 v11, 7, v10", dst=[11], src=[10])
    e.valu("v_lshlrev_b32 v11, 5, v11", dst=[11], src=[11])
    e.valu("v_lshl_add_u32 v11, v10, 8, v11", dst=[11], src=[10, 11])
    e.valu("v_lshl_add_u32 v11, v9, 3, v11", dst=[11], src=[9, 11])
    for db in range(8):
        e.valu(f"v_xor_b32 v{AV+db}, {db*32}, v11", dst=[AV + db], src=[11])
    for i in range(96):
        e.valu(f"v_mov_b32 v{O_BASE+i}, 0", dst=[O_BASE + i])
    for qb in range(3):
        e.valu(f"v_mov_b32 v{LS+qb}, 0", dst=[LS + qb])
    if o.nocompute:
        for j in range(33):
            e.salu("s_barrier")
            if j == 0:
                e.salu("s_waitcnt vmcnt(0)")
                stamp(e, o)
        stamp(e, o)
        for qb in range(3):
            so = ["0", f"s{s4096}", f"s{s8192}"][qb]
            for ep in range(4):
                e.add(I(f"buffer_store_dwordx4 {vr(Qreg(qb,ep),4)}, v{VOUT}, s[{sO}:{sO+3}], {so} offen offset:{ep*64}", kind="store"))
        stamp(e, o)
        e.salu("s_waitcnt vmcnt(0)")
        stamp(e, o)
        e.salu("s_endpgm")
    e.salu("s_barrier")
    stamp(e, o)
    for f in range(4):
        k_read(e, f, 3)
    e.salu("s_waitcnt vmcnt(0)")
    if o.stamp:
        stamp(e, o)
        for f in range(4):
            k_read(e, f, 3)
    phase_A(e, o, cur=1, nxt=0, uslot=3, do_qk=True, do_sm=False)
    for s in range(4):
        e.valu(f"v_xor_b32 v{AK+s}, 0x10000, v{AK+s}", dst=[AK + s], src=[AK + s])
    e.wait_lds_all()
    e.salu("s_barrier")
    for f in range(4):
        k_read(e, f, 0)
    e.nop(3)
    first_max(e, 0)
    e.salu(f"s_mov_b32 s{sCnt}, 7")
    if o.stamp == 5:
        stamp(e, o, True)
        for f in range(4):
            k_read(e, f, 0)
    pro_end = len(e.out)
    ldsq_at_loop = list(e.ldsq)
    rares = []
    e.label("L_loop")
    for u in range(4):
        cur, nxt = u % 2, (u + 1) % 2
        phase_A(e, o, cur, nxt, u)
        lab = f"L_rare_m{u}"
        phase_B(e, o, cur, nxt, u, (u + 1) % 4, toggle=(u == 3), rare_label=lab)
        rares.append((lab, nxt))
    assert e.ldsq == ldsq_at_loop, (e.ldsq, ldsq_at_loop)
    e.salu(f"s_sub_u32 s{sCnt}, s{sCnt}, 1")
    e.salu(f"s_cmp_lg_u32 s{sCnt}, 0")
    e.salu("s_cbranch_scc1 L_loop")
    loop_end = len(e.out)
    if o.stamp == 5:
        stamp(e, o, True)
        for f in range(4):
            k_read(e, f, 0)
    for u in range(3):
        cur, nxt = u % 2, (u + 1) % 2
        phase_A(e, o, cur, nxt, u)
        lab = f"L_rare_t{u}"
        last = (u == 2)
        phase_B(e, o, cur, nxt, u, (u + 1) % 4, rare_label=lab, barrier=not last)
        rares.append((lab, nxt))
    cur = 1
    phase_A(e, o, cur, 0, 3, do_qk=False, do_sm=True)
    e.wait_lds_all()
    stamp(e, o)
    e.salu("s_barrier")
    stamp(e, o)
    for db in range(4):
        v_read(e, db, 0, 3); v_read(e, db, 1, 3)
    INV = TMP + 10
    for qb in range(3):
        xlane_reduce(e, "add", LS + qb, TMP + 1, TMP + 2)
    for qb in range(3):
        e.valu(f"v_rcp_f32 v{INV+qb}, v{LS+qb}", dst=[INV + qb], src=[LS + qb], trans=True)
    snt = " nt" if o.store_nt else ""
    def epi(qb, ep, quad):
        st = S_BASE[0] + quad * 4
        ops = []
        for h in range(2):
            ob = Oreg(qb, 2 * ep + h)
            for r in range(4):
                ops.append(lambda e, x=ob + r: e.valu(f"v_mul_f32 v{x}, v{x}, v{INV+qb}", dst=[x], src=[x, INV + qb]))
            ops.append(lambda e, ob=ob, h=h: e.valu(f"v_cvt_pk_bf16_f32 v{st+2*h}, v{ob}, v{ob+1}", dst=[st + 2 * h], src=[ob, ob + 1]))
            ops.append(lambda e, ob=ob, h=h: e.valu(f"v_cvt_pk_bf16_f32 v{st+2*h+1}, v{ob+2}, v{ob+3}", dst=[st + 2 * h + 1], src=[ob + 2, ob + 3]))
        ops.append(lambda e: e.nop(1))
        ops.append(lambda e: e.add(I(f"v_permlane16_swap_b32 v{st}, v{st+2}", kind="perm", dst=[st, st + 2], src=[st, st + 2])))
        ops.append(lambda e: e.add(I(f"v_permlane16_swap_b32 v{st+1}, v{st+3}", kind="perm", dst=[st + 1, st + 3], src=[st + 1, st + 3])))
        so = ["0", f"s{s4096}", f"s{s8192}"][qb]
        ops.append(lambda e: e.add(I(f"buffer_store_dwordx4 {vr(st,4)}, v{VOUT}, s[{sO}:{sO+3}], {so} offen offset:{ep*64}{snt}",
                                     kind="store", src=rng(st, 4) + [VOUT])))
        return ops
    pend = []
    quad = 0
    for b in range(24):
        db, qb = b // 3, b % 3
        if b % 3 == 0:
            e.wait_lds(("V", db, 1))
        e.mfma(Oreg(qb, db), VF + (db % 4) * 4, Xreg(cur, qb, 0), Oreg(qb, db))
        if b % 3 == 2 and db + 4 < 8:
            v_read(e, db + 4, 0, 3); v_read(e, db + 4, 1, 3)
        if b >= 8 and (b - 8) % 6 == 0:
            ep = (b - 8) // 6
            for q in range(3):
                pend += epi(q, ep, quad); quad = (quad + 1) % 6
        k = 0
        while pend and k < 7:
            pend.pop(0)(e); k += 1
    for op in pend: op(e)
    e.nop(7)
    for q in range(3):
        for op in epi(q, 3, quad): op(e)
        quad = (quad + 1) % 6
    stamp(e, o)
    if o.stamp:
        e.salu("s_waitcnt vmcnt(0)")
        stamp(e, o)
    e.salu("s_endpgm")
    main_end = len(e.out)

    tr = e.out[:loop_end] + e.out[pro_end:loop_end] + e.out[loop_end:main_end]
    nb = check_hazards(tr, "main")

    for lab, buf in rares:
        st = len(e.out)
        rare_path(e, lab, buf)
        nb += check_hazards(e.out[st:], lab)

    e.label("L_loader")
    e.salu(f"s_setprio {o.prio_loader}")
    e.salu(f"s_sub_u32 s{sW}, s{sW}, 4")
    e.salu(f"s_lshl_b32 s{sCnt}, s{sW}, 3")
    e.valu(f"v_add_u32 v4, s{sCnt}, v3", dst=[4], src=[3])
    e.valu("v_add_u32 v5, 4, v4", dst=[5], src=[4])
    e.valu("v_and_b32 v6, 15, v4")
    e.valu("v_xor_b32 v6, v6, v2")
    e.valu("v_lshlrev_b32 v6, 4, v6")
    e.valu("v_lshl_add_u32 v10, v4, 8, v6")
    e.valu("v_and_b32 v6, 15, v5")
    e.valu("v_xor_b32 v6, v6, v2")
    e.valu("v_lshlrev_b32 v6, 4, v6")
    e.valu("v_lshl_add_u32 v11, v4, 8, v6")
    e.valu("v_and_b32 v6, 7, v4")
    e.valu("v_lshlrev_b32 v6, 1, v6")
    e.valu("v_xor_b32 v6, v6, v2")
    e.valu("v_lshlrev_b32 v6, 4, v6")
    e.valu("v_lshl_add_u32 v12, v4, 8, v6")
    e.valu("v_and_b32 v6, 7, v5")
    e.valu("v_lshlrev_b32 v6, 1, v6")
    e.valu("v_xor_b32 v6, v6, v2")
    e.valu("v_lshlrev_b32 v6, 4, v6")
    e.valu("v_lshl_add_u32 v13, v4, 8, v6")
    e.salu(f"s_lshl_b32 s{sM0K}, s{sW}, 11")
    if o.rot:
        if o.rot == 1:
            e.salu(f"s_mov_b32 s{sKo}, s2")
        elif o.rot == 2:
            e.salu(f"s_lshr_b32 s{sKo}, s2, 3")
        elif o.rot == 3:
            e.salu(f"s_lshr_b32 s{sKo}, s2, 3")
            e.salu(f"s_add_u32 s{sKo}, s{sKo}, s2")
        elif o.rot == 4:
            e.salu(f"s_lshr_b32 s{sKo}, s2, 3")
            e.salu(f"s_lshl_b32 s{sVo}, s2, 2")
            e.salu(f"s_add_u32 s{sKo}, s{sKo}, s{sVo}")
        e.salu(f"s_and_b32 s{sKo}, s{sKo}, 31")
        e.salu(f"s_lshl_b32 s{sKo}, s{sKo}, 13")
    else:
        e.salu(f"s_mov_b32 s{sKo}, 0")
    e.salu("s_waitcnt lgkmcnt(0)")
    e.salu(f"s_add_u32 s{sK}, s6, s{sTmp2}")
    e.salu(f"s_addc_u32 s{sK+1}, s7, 0")
    e.salu(f"s_and_b32 s{sK+1}, s{sK+1}, 0xffff")
    e.salu(f"s_add_u32 s{sV}, s8, s{sTmp2}")
    e.salu(f"s_addc_u32 s{sV+1}, s9, 0")
    e.salu(f"s_and_b32 s{sV+1}, s{sV+1}, 0xffff")
    pol = o.pol | (1 if o.nt else 0)
    nt = (" sc0" if pol & 2 else "") + (" sc1" if pol & 4 else "") + (" nt" if pol & 1 else "")
    perm = []
    for r in range(o.tstride):
        perm += list(range(r, 32, o.tstride))
    assert sorted(perm) == list(range(32))
    sRot = sTmp
    e.salu(f"s_mov_b32 s{sRot}, s{sKo}")
    lst = [0]
    def lstamp():
        if not o.stamp or o.stamp >= 4: return
        e.salu(f"s_memrealtime s[{sSt}:{sSt+1}]")
        e.salu("s_waitcnt lgkmcnt(0)")
        e.salu(f"s_mov_b32 s{48+lst[0]}, s{sSt}")
        lst[0] += 1
    lstamp()
    def issue(j):
        slot = (j - 1) % 8
        if j >= 1:
            e.salu(f"s_mov_b32 s{sVo}, s{sKo}")
            if j <= 31:
                e.salu(f"s_add_u32 s{sKo}, s{sRot}, {perm[j]*8192}")
                e.salu(f"s_and_b32 s{sKo}, s{sKo}, 0x3ffff")
        if j <= 31:
            e.salu(f"s_add_u32 m0, s{sM0K}, {slot*SLOT}")
            e.nop(0)
            e.add(I(f"buffer_load_dwordx4 v10, s[{sK}:{sK+3}], s{sKo} offen{nt} lds", kind="vmem"))
            e.add(I(f"buffer_load_dwordx4 v11, s[{sK}:{sK+3}], s{sKo} offen offset:1024{nt} lds", kind="vmem"))
        if j >= 1:
            e.salu(f"s_add_u32 m0, s{sM0K}, {slot*SLOT + 8192}")
            e.nop(0)
            e.add(I(f"buffer_load_dwordx4 v12, s[{sV}:{sV+3}], s{sVo} offen{nt} lds", kind="vmem"))
            e.add(I(f"buffer_load_dwordx4 v13, s[{sV}:{sV+3}], s{sVo} offen offset:1024{nt} lds", kind="vmem"))
    def nins(j): return 2 if j in (0, 32) else 4
    for j in range(8):
        issue(j)
        if j == 0 and o.qfirst:
            e.salu("s_barrier")
    lstamp()
    for j in range(33):
        hi = min(32, max(7, j + 6))
        N = sum(nins(i) for i in range(j + 1, hi + 1))
        e.salu(f"s_waitcnt vmcnt({N})")
        lstamp()
        e.salu("s_barrier")
        if 1 <= j <= 25 and not o.noload:
            issue(j + 7)
    if o.stamp and o.stamp < 4:
        e.valu(f"v_mov_b32 v{VST+1}, s{sSt+1}")
        e.valu(f"v_mov_b32 v{VST+2}, 0")
        for i in range(lst[0]):
            e.valu(f"v_mov_b32 v{VST}, s{48+i}")
            e.add(I(f"buffer_store_dwordx2 {vr(VST,2)}, v{VST+2}, s[{sWS}:{sWS+3}], s{sStOff} offen offset:{i*8}", kind="vmem"))
            e.nop(1)
    e.label("L_end")
    e.salu("s_endpgm")

    hdr = f"""; Kernarg layout for this problem (48 bytes, ptrs only, base s[0:1]):
;   offset  24: d_out     shape=(8, 32, 192, 128) dtype=bfloat16 (2 bytes/elem)
; waves 0-3 compute 48 q rows each (flash attention, online softmax, lazy rescale with run-time check),
; @launch grid=(256,1,1) block=(512,1,1) lds=131072
.amdgcn_target "amdgcn-amd-amdhsa--gfx950"
.text
.globl {NAME}_kernel
.p2align 8
.type {NAME}_kernel,@function
{NAME}_kernel:
"""
    ftr = f"""
.section .rodata,"a"
.p2align 6
.amdhsa_kernel {NAME}_kernel
  .amdhsa_next_free_vgpr 256
  .amdhsa_next_free_sgpr 96
  .amdhsa_accum_offset 256
  .amdhsa_group_segment_fixed_size 0
  .amdhsa_kernarg_size 48
  .amdhsa_user_sgpr_count 2
  .amdhsa_user_sgpr_kernarg_segment_ptr 1
  .amdhsa_system_sgpr_workgroup_id_x 1
.end_amdhsa_kernel
"""
    body = "\n".join(("" if i.kind == "label" else "    ") + i.text for i in e.out)
    return hdr + body + ftr, nb

if __name__ == "__main__":
    o = Opt()
    out = f"cdna_kernels/{NAME}.s"
    for a in sys.argv[1:]:
        k, v = a.split("=")
        if k == "out":
            out = v
        else:
            setattr(o, k, type(getattr(o, k))(float(v)) if isinstance(getattr(o, k), float) else int(v))
    txt, nb = gen(o)
    open(out, "w").write(txt)
    print("wrote", out, "hazards:", nb, "lines:", txt.count("\n"))
```

```python
import sys, struct, math
from gen import I, Emitter, rng, vr, check_hazards, f2u, NAME
from align import align_pass

class Opt:
    pol = 1
    T = 8.0
    prio_loader = 3
    store_nt = 0
    q_nt = 0
    remap = 1
    U = 5
    stamp = 0
    noload = 0
    nocompute = 0
    lead = 4
    lsleep = 2
    csleep = 0
    sync_b = 18
    align = 1
    qlds = 1

O_BASE = 0
Q_BASE = 96
S_BASE = [144, 168]
KF = 192
VF = 208
LA = 224
ONES = 236
FL = 240
AK = 244
AV = 245
NM = 246
VFR = 249
VFW = 250
VVAL = 251
MX = 252
T1 = 253

def Oreg(qb, db): return O_BASE + (qb * 8 + db) * 4
def Qreg(qb, s): return Q_BASE + (qb * 4 + s) * 4
def Xreg(buf, qb, kb, r=0): return S_BASE[buf] + qb * 8 + kb * 4 + r

sQ, sK, sV, sO = 12, 16, 20, 24
sW = 28
sC = 29
sT = 30
sCnt = 31
s4096, s8192 = 32, 33
sKo, sVo = 34, 35
sM0 = 36
sTmp = 37
sTmp2 = 38
sDelta = 39
sWS = 40
sSt = 44
sStOff = 46

PIECE = 1056
TILE = 8 * PIECE
SLOT = 2 * TILE
HALF = 4 * SLOT
RING = 8 * SLOT
FLAG_L = RING
FLAG_C = RING + 1024
LDS_BYTES = RING + 2048

def stamp(e, o, force=False):
    if not o.stamp:
        return
    if o.stamp == 5 and not force:
        return
    e.salu(f"{'s_memtime' if o.stamp in (3, 5) else 's_memrealtime'} s[{sSt}:{sSt+1}]")
    e.wait_lds_all()
    e.valu(f"v_mov_b32 v{FL}, s{sSt}", dst=[FL])
    e.valu(f"v_mov_b32 v{FL+1}, s{sSt+1}", dst=[FL + 1])
    e.valu(f"v_mov_b32 v{FL+2}, 0", dst=[FL + 2])
    e.add(I(f"buffer_store_dwordx2 {vr(FL,2)}, v{FL+2}, s[{sWS}:{sWS+3}], s{sStOff} offen", kind="vmem"))
    e.salu(f"s_add_u32 s{sStOff}, s{sStOff}, 8")
    e.nop(1)

def stamp_init(e, o):
    if not o.stamp:
        return
    e.salu(f"s_load_dwordx2 s[{sWS}:{sWS+1}], s[0:1], 40")
    e.salu(f"s_mov_b32 s{sWS+2}, 0x1000000")
    e.salu(f"s_mov_b32 s{sWS+3}, 0x00020000")
    e.salu(f"s_lshl_b32 s{sStOff}, s2, 3")
    e.salu(f"s_add_u32 s{sStOff}, s{sStOff}, s{sW}")
    e.salu(f"s_lshl_b32 s{sStOff}, s{sStOff}, 9")
    e.salu("s_waitcnt lgkmcnt(0)")

def k_read(e, f, uslot):
    kb, s = f // 4, f % 4
    d = KF + (f % 4) * 4
    e.lds(f"ds_read_b128 {vr(d,4)}, v{AK} offset:{uslot*SLOT + kb*512 + s*64}", ("K", f), dst=rng(d, 4), src=[AK])

def v_read(e, db, jh, uslot):
    d = VF + (db % 4) * 4 + jh * 2
    e.lds(f"ds_read_b64_tr_b16 {vr(d,2)}, v{AV} offset:{uslot*SLOT + TILE + jh*512 + db*32}", ("V", db, jh),
          dst=rng(d, 2), src=[AV])

def flag_read(e):
    e.lds(f"ds_read_b128 {vr(FL,4)}, v{VFR}", ("F",), dst=rng(FL, 4), src=[VFR])

def flag_test(e, lab):
    e.valu(f"v_min3_u32 v{FL}, v{FL}, v{FL+1}, v{FL+2}", dst=[FL], src=[FL, FL + 1, FL + 2])
    e.valu(f"v_min_u32 v{FL}, v{FL}, v{FL+3}", dst=[FL], src=[FL, FL + 3])
    e.valu(f"v_cmp_le_u32 vcc, v{FL}, v{VVAL}", src=[FL, VVAL])
    e.salu(f"s_cbranch_vccnz {lab}")

def poll_block(e, lab, sleep):
    e.label(lab)
    if sleep:
        e.salu(f"s_sleep {sleep}")
    e.add(I(f"ds_read_b128 {vr(FL,4)}, v{VFR}", kind="lds", dst=rng(FL, 4), src=[VFR]))
    e.salu("s_waitcnt lgkmcnt(0)")
    flag_test(e, lab)
    e.salu(f"s_branch {lab}_ret")

def publish(e):
    e.valu(f"v_add_u32 v{VVAL}, 1, v{VVAL}", dst=[VVAL], src=[VVAL])
    e.lds(f"ds_write_b32 v{VFW}, v{VVAL}", ("W",), src=[VFW, VVAL])

def softmax_ops(buf):
    ops = []
    for qb in range(3):
        X = [Xreg(buf, qb, 0) + i for i in range(8)]
        def E(i, X=X): return lambda e: e.valu(f"v_exp_f32 v{X[i]}, v{X[i]}", dst=[X[i]], src=[X[i]], trans=True)
        def C(i, X=X): return lambda e: e.valu(f"v_cvt_pk_bf16_f32 v{X[i]}, v{X[2*i]}, v{X[2*i+1]}", dst=[X[i]], src=[X[2*i], X[2*i+1]])
        ops += [E(0), E(1), E(2), C(0), E(3), E(4), C(1), E(5), E(6), C(2), E(7)]
        ops.append(("late", C(3)))
    out = []
    pend = None
    for op in ops:
        if isinstance(op, tuple):
            pend = op[1]
            continue
        out.append(op)
        if pend:
            out.append(pend); pend = None
    if pend:
        out.append(lambda e: e.nop(0)); out.append(pend)
    return out

def fma_max_ops(buf):
    ops = []
    order = [(qb, kb, r) for kb in range(2) for qb in range(3) for r in range(4)]
    regs = [Xreg(buf, qb, kb, r) for (qb, kb, r) in order]
    def F(i):
        qb = order[i][0]; x = regs[i]
        return lambda e: e.valu(f"v_fma_f32 v{x}, v{x}, s{sC}, v{NM+qb}", dst=[x], src=[x, NM + qb])
    def M0():
        return lambda e: e.valu(f"v_max3_f32 v{MX}, v{regs[0]}, v{regs[1]}, v{regs[2]}", dst=[MX], src=regs[0:3])
    def M(i):
        return lambda e: e.valu(f"v_max3_f32 v{MX}, v{MX}, v{regs[i]}, v{regs[i+1]}", dst=[MX], src=[MX, regs[i], regs[i + 1]])
    def ML():
        return lambda e: e.valu(f"v_max_f32 v{MX}, v{MX}, v{regs[23]}", dst=[MX], src=[MX, regs[23]])
    ops += [F(0), F(1), F(2), F(3), M0()]
    i = 3; nf = 4
    while i < 23:
        while nf <= min(i + 2, 23):
            ops.append(F(nf)); nf += 1
        ops.append(M(i)); i += 2
    while nf <= 23:
        ops.append(F(nf)); nf += 1
    ops.append(ML())
    return ops

def spread(n_slots, ops, lead=0):
    res = [[] for _ in range(n_slots + 1)]
    res[0] = ops[:lead]
    rest = ops[lead:]
    for k, op in enumerate(rest):
        res[1 + (k * n_slots) // len(rest)].append(op)
    return res

def phase_A(e, o, cur, nxt, uslot, do_qk=True, do_sm=True):
    sm = softmax_ops(cur) if do_sm else []
    if not do_qk:
        for op in sm: op(e)
        return
    fill = spread(24, sm, lead=o.lead) if sm else [[] for _ in range(25)]
    for op in fill[0]: op(e)
    for a in range(24):
        kb, s, qb = a // 12, (a % 12) // 3, a % 3
        f = a // 3
        if a % 6 == 0:
            e.wait_lds(("K", f + 1))
        d = Xreg(nxt, qb, kb)
        e.mfma(d, KF + (f % 4) * 4, Qreg(qb, s), None if s == 0 else d)
        if a in (2, 5, 8, 11):
            k_read(e, f + 4, uslot)
        if do_sm and 12 <= a < 20:
            k = a - 12
            v_read(e, k // 2, k % 2, uslot)
        for op in fill[1 + a]: op(e)

def phase_B(e, o, cur, nxt, uslot, next_uslot, do_fma=True, sync=True, toggle=False, lab=None, polls=None, rares=None):
    fm = fma_max_ops(nxt) if do_fma else []
    nsl = 25
    fill = spread(nsl, fm) if fm else [[] for _ in range(nsl + 1)]
    slot = 0
    def fillers():
        nonlocal slot
        if slot < nsl:
            for op in fill[1 + slot]: op(e)
        slot += 1
    for qb in range(3):
        e.mfma(LA + 4 * qb, ONES, Xreg(cur, qb, 0), LA + 4 * qb)
        fillers()
    for b in range(24):
        db, qb = b // 3, b % 3
        if b == o.sync_b and sync:
            e.wait_lds_all()
            publish(e)
            flag_test(e, lab + "_poll")
            e.label(lab + "_poll_ret")
            polls.append(lab + "_poll")
            stamp(e, o)
        elif b % 6 == 0:
            e.wait_lds(("V", db + 1, 1))
        e.mfma(Oreg(qb, db), VF + (db % 4) * 4, Xreg(cur, qb, 0), Oreg(qb, db))
        if b in (2, 5, 8, 11):
            v_read(e, db + 4, 0, uslot)
            v_read(e, db + 4, 1, uslot)
        if b == 12 and sync:
            flag_read(e)
        if toggle and b == 13:
            e.valu(f"v_add_u32 v{AK}, s{sDelta}, v{AK}", dst=[AK], src=[AK])
            e.valu(f"v_add_u32 v{AV}, s{sDelta}, v{AV}", dst=[AV], src=[AV])
            e.salu(f"s_sub_u32 s{sDelta}, 0, s{sDelta}")
        if sync and o.sync_b <= b < o.sync_b + 4:
            k_read(e, b - o.sync_b, next_uslot)
        fillers()
        if b == 22 and do_fma:
            e.valu(f"v_cmp_lt_f32 vcc, s{sT}, v{MX}", src=[MX])
    if do_fma:
        e.salu(f"s_cbranch_vccnz {lab}_rare")
        e.label(lab + "_rare_ret")
        rares.append((lab + "_rare", nxt))

def xlane_reduce(e, op, t, a, b):
    ins = "v_max_f32" if op == "max" else "v_add_f32"
    for swp in ("v_permlane16_swap_b32", "v_permlane32_swap_b32"):
        e.valu(f"v_mov_b32 v{a}, v{t}", dst=[a], src=[t])
        e.valu(f"v_mov_b32 v{b}, v{t}", dst=[b], src=[t])
        e.nop(1)
        e.add(I(f"{swp} v{a}, v{b}", kind="perm", dst=[a, b], src=[a, b]))
        e.nop(1)
        e.valu(f"{ins} v{t}, v{a}, v{b}", dst=[t], src=[a, b])

def rare_path(e, label, buf):
    e.label(label)
    e.nop(15)
    t, a, b = T1, T1 + 1, T1 + 2
    for qb in range(3):
        X = [Xreg(buf, qb, 0) + i for i in range(8)]
        e.valu(f"v_max3_f32 v{t}, v{X[0]}, v{X[1]}, v{X[2]}", dst=[t], src=X[0:3])
        e.valu(f"v_max3_f32 v{t}, v{t}, v{X[3]}, v{X[4]}", dst=[t], src=[t, X[3], X[4]])
        e.valu(f"v_max3_f32 v{t}, v{t}, v{X[5]}, v{X[6]}", dst=[t], src=[t, X[5], X[6]])
        e.valu(f"v_max3_f32 v{t}, v{t}, v{X[7]}, 0", dst=[t], src=[t, X[7]])
        xlane_reduce(e, "max", t, a, b)
        e.valu(f"v_sub_f32 v{NM+qb}, v{NM+qb}, v{t}", dst=[NM + qb], src=[NM + qb, t])
        for i in range(8):
            e.valu(f"v_sub_f32 v{X[i]}, v{X[i]}, v{t}", dst=[X[i]], src=[X[i], t])
        e.valu(f"v_exp_f32 v{a}, -v{t}", dst=[a], src=[t], trans=True)
        e.nop(1)
        for r in range(4):
            x = LA + 4 * qb + r
            e.valu(f"v_mul_f32 v{x}, v{x}, v{a}", dst=[x], src=[x, a])
        for db in range(8):
            for r in range(4):
                x = Oreg(qb, db) + r
                e.valu(f"v_mul_f32 v{x}, v{x}, v{a}", dst=[x], src=[x, a])
    e.nop(3)
    e.salu(f"s_branch {label}_ret")

def first_max(e, buf):
    t, a, b = T1, T1 + 1, T1 + 2
    for qb in range(3):
        X = [Xreg(buf, qb, 0) + i for i in range(8)]
        for i in range(8):
            e.valu(f"v_mul_f32 v{X[i]}, s{sC}, v{X[i]}", dst=[X[i]], src=[X[i]])
        e.valu(f"v_max3_f32 v{t}, v{X[0]}, v{X[1]}, v{X[2]}", dst=[t], src=X[0:3])
        e.valu(f"v_max3_f32 v{t}, v{t}, v{X[3]}, v{X[4]}", dst=[t], src=[t, X[3], X[4]])
        e.valu(f"v_max3_f32 v{t}, v{t}, v{X[5]}, v{X[6]}", dst=[t], src=[t, X[5], X[6]])
        e.valu(f"v_max_f32 v{t}, v{t}, v{X[7]}", dst=[t], src=[t, X[7]])
        xlane_reduce(e, "max", t, a, b)
        e.valu(f"v_sub_f32 v{NM+qb}, 0, v{t}", dst=[NM + qb], src=[t])
        for i in range(8):
            e.valu(f"v_sub_f32 v{X[i]}, v{X[i]}, v{t}", dst=[X[i]], src=[X[i], t])

def gen(o):
    e = Emitter()
    c = math.log2(math.e) / math.sqrt(128.0)
    polls, rares = [], []
    e.salu("s_cmp_ge_u32 s2, 256")
    e.salu("s_cbranch_scc1 L_end")
    e.salu("s_load_dwordx8 s[4:11], s[0:1], 0")
    e.valu("v_lshrrev_b32 v1, 6, v0", dst=[1], src=[0])
    e.valu("v_and_b32 v0, 63, v0", dst=[0], src=[0])
    e.add(I(f"v_readfirstlane_b32 s{sW}, v1", kind="rfl", src=[1]))
    e.valu("v_and_b32 v2, 3, v1", dst=[2], src=[1])
    e.valu("v_lshlrev_b32 v2, 2, v2", dst=[2], src=[2])
    e.valu("v_lshl_add_u32 v2, v0, 4, v2", dst=[2], src=[0, 2])
    e.valu("v_lshrrev_b32 v3, 2, v1", dst=[3], src=[1])
    e.valu("v_lshlrev_b32 v3, 10, v3", dst=[3], src=[3])
    e.valu(f"v_add_u32 v{VFR}, {FLAG_L}, v3", dst=[VFR], src=[3])
    e.valu(f"v_sub_u32 v{VFW}, {FLAG_C}, v3", dst=[VFW], src=[3])
    e.valu(f"v_add_u32 v{VFW}, v{VFW}, v2", dst=[VFW], src=[VFW, 2])
    e.valu(f"v_mov_b32 v{VVAL}, 0", dst=[VVAL])
    e.add(I(f"ds_write_b32 v{VFW}, v{VVAL}", kind="lds", src=[VFW, VVAL]))
    if o.remap:
        e.salu("s_and_b32 s3, s2, 7")
        e.salu("s_lshl_b32 s3, s3, 5")
        e.salu("s_lshr_b32 s2, s2, 3")
        e.salu("s_or_b32 s2, s2, s3")
    e.valu("v_and_b32 v2, 15, v0", dst=[2], src=[0])
    e.valu("v_lshrrev_b32 v3, 4, v0", dst=[3], src=[0])
    e.salu(f"s_mul_i32 s{sTmp}, s2, 49152")
    e.salu(f"s_lshl_b32 s{sTmp2}, s2, 18")
    e.salu(f"s_mov_b32 s{sQ+2}, 49152")
    e.salu(f"s_mov_b32 s{sQ+3}, 0x00020000")
    e.salu(f"s_mov_b32 s{sK+2}, 262144")
    e.salu(f"s_mov_b32 s{sK+3}, 0x00020000")
    e.salu(f"s_mov_b32 s{sV+2}, 262144")
    e.salu(f"s_mov_b32 s{sV+3}, 0x00020000")
    e.salu(f"s_mov_b32 s{sO+2}, 49152")
    e.salu(f"s_mov_b32 s{sO+3}, 0x00020000")
    e.salu(f"s_mov_b32 s{s4096}, 4096")
    e.salu(f"s_mov_b32 s{s8192}, 8192")
    e.salu("s_waitcnt lgkmcnt(0)")
    e.salu("s_barrier")
    stamp_init(e, o)
    stamp(e, o)
    e.salu(f"s_cmp_ge_u32 s{sW}, 4")
    e.salu("s_cbranch_scc1 L_loader")

    e.salu(f"s_mul_i32 s{sCnt}, s{sW}, {48*256}")
    e.valu("v_lshlrev_b32 v4, 8, v2", dst=[4], src=[2])
    e.valu("v_lshl_add_u32 v4, v3, 4, v4", dst=[4], src=[3, 4])
    e.valu(f"v_add_u32 v4, s{sCnt}, v4", dst=[4], src=[4])
    e.salu(f"s_add_u32 s{sQ}, s4, s{sTmp}")
    e.salu(f"s_addc_u32 s{sQ+1}, s5, 0")
    e.salu(f"s_and_b32 s{sQ+1}, s{sQ+1}, 0xffff")
    qnt = " nt" if o.q_nt else ""
    for qb in range(3):
        if o.qlds: break
        so = ["0", f"s{s4096}", f"s{s8192}"][qb]
        for s in range(4):
            d = Qreg(qb, s)
            e.add(I(f"buffer_load_dwordx4 {vr(d,4)}, v4, s[{sQ}:{sQ+3}], {so} offen offset:{s*64}{qnt}", kind="vmem",
                    dst=rng(d, 4), src=[4]))
    e.salu(f"s_add_u32 s{sO}, s10, s{sTmp}")
    e.salu(f"s_addc_u32 s{sO+1}, s11, 0")
    e.salu(f"s_and_b32 s{sO+1}, s{sO+1}, 0xffff")
    e.salu(f"s_mov_b32 s{sC}, 0x{f2u(c):08x}")
    e.salu(f"s_mov_b32 s{sT}, 0x{f2u(o.T):08x}")
    e.salu(f"s_mov_b32 s{sDelta}, {HALF}")
    e.salu(f"s_mov_b32 s{sTmp2}, {PIECE}")
    e.valu("v_and_b32 v5, 7, v2", dst=[5], src=[2])
    e.valu(f"v_mul_u32_u24 v5, s{sTmp2}, v5", dst=[5], src=[5])
    e.valu("v_lshrrev_b32 v6, 3, v2", dst=[6], src=[2])
    e.valu("v_lshl_add_u32 v5, v6, 8, v5", dst=[5], src=[6, 5])
    e.valu("v_lshl_add_u32 v5, v3, 4, v5", dst=[5], src=[3, 5])
    e.valu(f"v_add_u32 v{AK}, {HALF}, v5", dst=[AK], src=[5])
    e.valu("v_lshrrev_b32 v8, 2, v2", dst=[8], src=[2])
    e.valu("v_lshl_add_u32 v8, v3, 2, v8", dst=[8], src=[3, 8])
    e.valu("v_and_b32 v9, 7, v8", dst=[9], src=[8])
    e.valu(f"v_mul_u32_u24 v9, s{sTmp2}, v9", dst=[9], src=[9])
    e.valu("v_lshrrev_b32 v8, 3, v8", dst=[8], src=[8])
    e.valu("v_lshl_add_u32 v9, v8, 8, v9", dst=[9], src=[8, 9])
    e.valu("v_and_b32 v8, 3, v0", dst=[8], src=[0])
    e.valu(f"v_lshl_add_u32 v{AV}, v8, 3, v9", dst=[AV], src=[8, 9])
    if o.qlds:
        for qb in range(3):
            e.salu(f"s_mul_i32 s{sKo}, s{sW}, 3")
            e.salu(f"s_add_u32 s{sKo}, s{sKo}, {qb}")
            e.salu(f"s_lshr_b32 s{sVo}, s{sKo}, 1")
            e.salu(f"s_mul_i32 s{sVo}, s{sVo}, {TILE}")
            e.salu(f"s_and_b32 s{sKo}, s{sKo}, 1")
            e.salu(f"s_lshl_b32 s{sKo}, s{sKo}, 9")
            e.salu(f"s_add_u32 s{sKo}, s{sKo}, s{sVo}")
            e.valu(f"v_add_u32 v{T1+qb}, s{sKo}, v{AK}", dst=[T1 + qb], src=[AK])
    for i in range(96):
        e.valu(f"v_mov_b32 v{O_BASE+i}, 0", dst=[O_BASE + i])
    for i in range(12):
        e.valu(f"v_mov_b32 v{LA+i}, 0", dst=[LA + i])
    for i in range(4):
        e.valu(f"v_mov_b32 v{ONES+i}, 0x3f803f80", dst=[ONES + i])

    def out_voff(dst):
        a, b = T1 + 1, T1 + 2
        e.valu(f"v_mbcnt_lo_u32_b32 v{a}, -1, 0", dst=[a])
        e.valu(f"v_mbcnt_hi_u32_b32 v{a}, -1, v{a}", dst=[a], src=[a])
        e.salu(f"s_mul_i32 s{sCnt}, s{sW}, {48*256}")
        e.valu(f"v_and_b32 v{dst}, 15, v{a}", dst=[dst], src=[a])
        e.valu(f"v_lshlrev_b32 v{dst}, 8, v{dst}", dst=[dst], src=[dst])
        e.valu(f"v_bfe_u32 v{b}, v{a}, 4, 1", dst=[b], src=[a])
        e.valu(f"v_lshl_add_u32 v{dst}, v{b}, 5, v{dst}", dst=[dst], src=[b, dst])
        e.valu(f"v_lshrrev_b32 v{b}, 5, v{a}", dst=[b], src=[a])
        e.valu(f"v_lshl_add_u32 v{dst}, v{b}, 4, v{dst}", dst=[dst], src=[b, dst])
        e.valu(f"v_add_u32 v{dst}, s{sCnt}, v{dst}", dst=[dst], src=[dst])

    def wait_stage(lab):
        flag_read(e)
        e.wait_lds_all()
        flag_test(e, lab)
        e.label(lab + "_ret")
        polls.append(lab)

    if o.nocompute:
        for j in range(33):
            wait_stage(f"L_nc{j}")
            if j == 0:
                e.salu("s_waitcnt vmcnt(0)")
                stamp(e, o)
            publish(e)
        stamp(e, o)
        out_voff(T1)
        for qb in range(3):
            so = ["0", f"s{s4096}", f"s{s8192}"][qb]
            for ep in range(4):
                e.add(I(f"buffer_store_dwordx4 {vr(Qreg(qb,ep),4)}, v{T1}, s[{sO}:{sO+3}], {so} offen offset:{ep*64}", kind="store"))
        stamp(e, o)
        e.salu("s_waitcnt vmcnt(0)")
        stamp(e, o)
        e.salu("s_endpgm")

    wait_stage("L_w0")
    stamp(e, o)
    if o.qlds:
        for s in range(4):
            for qb in range(3):
                d = Qreg(qb, s)
                e.lds(f"ds_read_b128 {vr(d,4)}, v{T1+qb} offset:{s*64}", ("Q", qb, s), dst=rng(d, 4), src=[T1 + qb])
        e.wait_lds(("Q", 2, 1))
    for f in range(4):
        k_read(e, f, 3)
    if not o.qlds:
        e.salu("s_waitcnt vmcnt(0)")
    if o.stamp in (1, 3):
        stamp(e, o)
        for f in range(4):
            k_read(e, f, 3)
    phase_A(e, o, cur=1, nxt=0, uslot=3, do_qk=True, do_sm=False)
    e.valu(f"v_subrev_u32 v{AK}, s{sDelta}, v{AK}", dst=[AK], src=[AK])
    flag_read(e)
    e.wait_lds_all()
    publish(e)
    flag_test(e, "L_w1")
    e.label("L_w1_ret")
    polls.append("L_w1")
    for f in range(4):
        k_read(e, f, 0)
    first_max(e, 0)
    e.salu(f"s_mov_b32 s{sCnt}, 7")
    if o.stamp == 5:
        stamp(e, o, True)
        publish_dummy = None
        e.lds(f"ds_write_b32 v{VFW}, v{VVAL}", ("W",), src=[VFW, VVAL])
        for f in range(4):
            k_read(e, f, 0)
    pro_end = len(e.out)
    ldsq_at_loop = list(e.ldsq)
    e.label("L_loop")
    for u in range(4):
        cur, nxt = u % 2, (u + 1) % 2
        phase_A(e, o, cur, nxt, u)
        phase_B(e, o, cur, nxt, u, (u + 1) % 4, toggle=(u == 3), lab=f"L_m{u}", polls=polls, rares=rares)
    if o.stamp in (1, 3):
        ldsq_at_loop = [t for t in ldsq_at_loop if t != ("W",)]
    assert [t for t in e.ldsq] == ldsq_at_loop or o.stamp, (e.ldsq, ldsq_at_loop)
    e.salu(f"s_sub_u32 s{sCnt}, s{sCnt}, 1")
    e.salu(f"s_cmp_lg_u32 s{sCnt}, 0")
    e.salu("s_cbranch_scc1 L_loop")
    loop_end = len(e.out)
    if o.stamp == 5:
        stamp(e, o, True)
        for f in range(4):
            k_read(e, f, 0)
    for u in range(3):
        cur, nxt = u % 2, (u + 1) % 2
        phase_A(e, o, cur, nxt, u)
        phase_B(e, o, cur, nxt, u, (u + 1) % 4, lab=f"L_t{u}", polls=polls, rares=rares, sync=(u != 2))
    cur = 1
    e.valu(f"v_add_u32 v{VVAL}, 1, v{VVAL}", dst=[VVAL], src=[VVAL])
    phase_A(e, o, cur, 0, 3, do_qk=False, do_sm=True)
    e.nop(0)
    for qb in range(3):
        e.mfma(LA + 4 * qb, ONES, Xreg(cur, qb, 0), LA + 4 * qb)
    VOUT = T1
    out_voff(VOUT)
    stamp(e, o)
    wait_stage("L_w32")
    stamp(e, o)
    for db in range(4):
        v_read(e, db, 0, 3); v_read(e, db, 1, 3)
    INV = NM
    for qb in range(3):
        e.valu(f"v_rcp_f32 v{INV+qb}, v{LA+4*qb}", dst=[INV + qb], src=[LA + 4 * qb], trans=True)
    snt = " nt" if o.store_nt else ""
    def epi(qb, ep, quad):
        st = S_BASE[0] + quad * 4
        ops = []
        for h in range(2):
            ob = Oreg(qb, 2 * ep + h)
            for r in range(4):
                ops.append(lambda e, x=ob + r: e.valu(f"v_mul_f32 v{x}, v{x}, v{INV+qb}", dst=[x], src=[x, INV + qb]))
            ops.append(lambda e, ob=ob, h=h: e.valu(f"v_cvt_pk_bf16_f32 v{st+2*h}, v{ob}, v{ob+1}", dst=[st + 2 * h], src=[ob, ob + 1]))
            ops.append(lambda e, ob=ob, h=h: e.valu(f"v_cvt_pk_bf16_f32 v{st+2*h+1}, v{ob+2}, v{ob+3}", dst=[st + 2 * h + 1], src=[ob + 2, ob + 3]))
        ops.append(lambda e: e.nop(1))
        ops.append(lambda e: e.add(I(f"v_permlane16_swap_b32 v{st}, v{st+2}", kind="perm", dst=[st, st + 2], src=[st, st + 2])))
        ops.append(lambda e: e.add(I(f"v_permlane16_swap_b32 v{st+1}, v{st+3}", kind="perm", dst=[st + 1, st + 3], src=[st + 1, st + 3])))
        so = ["0", f"s{s4096}", f"s{s8192}"][qb]
        ops.append(lambda e: e.add(I(f"buffer_store_dwordx4 {vr(st,4)}, v{VOUT}, s[{sO}:{sO+3}], {so} offen offset:{ep*64}{snt}",
                                     kind="store", src=rng(st, 4) + [VOUT])))
        return ops
    pend = []
    quad = 0
    for b in range(24):
        db, qb = b // 3, b % 3
        if b % 3 == 0:
            e.wait_lds(("V", db, 1))
        e.mfma(Oreg(qb, db), VF + (db % 4) * 4, Xreg(cur, qb, 0), Oreg(qb, db))
        if b % 3 == 2 and db + 4 < 8:
            v_read(e, db + 4, 0, 3); v_read(e, db + 4, 1, 3)
        if b >= 8 and (b - 8) % 6 == 0:
            ep = (b - 8) // 6
            for q in range(3):
                pend += epi(q, ep, quad); quad = (quad + 1) % 6
        k = 0
        while pend and k < 7:
            pend.pop(0)(e); k += 1
    for op in pend: op(e)
    e.nop(7)
    for q in range(3):
        for op in epi(q, 3, quad): op(e)
        quad = (quad + 1) % 6
    stamp(e, o)
    if o.stamp:
        e.salu("s_waitcnt vmcnt(0)")
        stamp(e, o)
    e.salu("s_endpgm")
    main_end = len(e.out)

    if o.align:
        align_pass(e.out, 0, main_end)
    tr = e.out[:loop_end] + e.out[pro_end:loop_end] + e.out[loop_end:main_end]
    nb = check_hazards(tr, "main")

    for lab in polls:
        poll_block(e, lab, o.csleep)
    for lab, buf in rares:
        st = len(e.out)
        rare_path(e, lab, buf)
        nb += check_hazards(e.out[st:], lab)

    e.label("L_loader")
    e.salu(f"s_setprio {o.prio_loader}")
    e.salu(f"s_sub_u32 s{sW}, s{sW}, 4")
    e.salu(f"s_lshl_b32 s{sCnt}, s{sW}, 9")
    e.valu("v_lshlrev_b32 v10, 11, v3")
    e.valu("v_lshl_add_u32 v10, v2, 4, v10")
    e.valu(f"v_add_u32 v10, s{sCnt}, v10")
    e.valu("v_add_u32 v11, 256, v10")
    e.salu(f"s_mul_i32 s{sM0}, s{sW}, {2*PIECE}")
    e.salu(f"s_add_u32 s{sK}, s6, s{sTmp2}")
    e.salu(f"s_addc_u32 s{sK+1}, s7, 0")
    e.salu(f"s_and_b32 s{sK+1}, s{sK+1}, 0xffff")
    e.salu(f"s_add_u32 s{sV}, s8, s{sTmp2}")
    e.salu(f"s_addc_u32 s{sV+1}, s9, 0")
    e.salu(f"s_and_b32 s{sV+1}, s{sV+1}, 0xffff")
    pol = o.pol
    nt = (" sc0" if pol & 2 else "") + (" sc1" if pol & 4 else "") + (" nt" if pol & 1 else "")
    lst = [0]
    def lstamp():
        if o.stamp not in (1, 3): return
        e.salu(f"{'s_memtime' if o.stamp == 3 else 's_memrealtime'} s[{sSt}:{sSt+1}]")
        e.salu("s_waitcnt lgkmcnt(0)")
        e.salu(f"s_mov_b32 s{48+lst[0]}, s{sSt}")
        lst[0] += 1
    units = [("K", 0, 0)]
    if o.qlds:
        units += [("Q", t, 0) for t in range(6)]
        e.salu(f"s_add_u32 s{sQ}, s4, s{sTmp}")
        e.salu(f"s_addc_u32 s{sQ+1}, s5, 0")
        e.salu(f"s_and_b32 s{sQ+1}, s{sQ+1}, 0xffff")
    for j in range(1, 32):
        units += [("K", j, j), ("V", j - 1, j)]
    units.append(("V", 31, 32))
    def issue(u):
        kind, tile, stage = units[u]
        if o.noload and stage >= 8:
            return
        slot = (stage - 1) % 8
        base = slot * SLOT + (TILE if kind == "V" else 0)
        srd = sK if kind == "K" else sV
        if kind == "Q":
            base = 4 * SLOT + tile * TILE
            srd = sQ
        e.salu(f"s_mov_b32 s{sKo}, {tile*8192}")
        e.salu(f"s_add_u32 m0, s{sM0}, {base}")
        e.nop(0)
        e.add(I(f"buffer_load_dwordx4 v10, s[{srd}:{srd+3}], s{sKo} offen{nt} lds", kind="vmem"))
        e.salu(f"s_add_u32 m0, s{sM0}, {base + PIECE}")
        e.nop(0)
        e.add(I(f"buffer_load_dwordx4 v11, s[{srd}:{srd+3}], s{sKo} offen{nt} lds", kind="vmem"))
    def last_unit_of_stage(u):
        return u == len(units) - 1 or units[u + 1][2] != units[u][2]
    lpolls = []
    VCNT = VVAL
    VNEED = MX
    def lpublish():
        e.valu(f"v_add_u32 v{VCNT}, 1, v{VCNT}")
        e.add(I(f"ds_write_b32 v{VFW}, v{VCNT}", kind="lds"))
        lstamp()
    U = o.U
    lstamp()
    for u in range(U):
        issue(u)
    for u in range(U, len(units) + U):
        done = u - U
        n_after = min(u, len(units)) - done - 1
        e.salu(f"s_waitcnt vmcnt({2*n_after})")
        if last_unit_of_stage(done):
            lpublish()
        if u < len(units):
            stage = units[u][2]
            if (stage >= 8 or (stage == 5 and o.qlds)) and (units[u - 1][2] != stage):
                lab = f"L_lp{stage}"
                e.label(lab)
                e.add(I(f"ds_read_b128 {vr(FL,4)}, v{VFR}", kind="lds"))
                e.salu("s_waitcnt lgkmcnt(0)")
                e.valu(f"v_min3_u32 v{FL}, v{FL}, v{FL+1}, v{FL+2}")
                e.valu(f"v_min_u32 v{FL}, v{FL}, v{FL+3}")
                e.valu(f"v_cmp_gt_u32 vcc, {max(stage-7, 1)}, v{FL}")
                e.salu(f"s_cbranch_vccnz {lab}_slp")
                lpolls.append(lab)
            issue(u)
    if o.stamp in (1, 3):
        e.valu(f"v_mov_b32 v{FL+1}, s{sSt+1}")
        e.valu(f"v_mov_b32 v{FL+2}, 0")
        for i in range(lst[0]):
            e.valu(f"v_mov_b32 v{FL}, s{48+i}")
            e.add(I(f"buffer_store_dwordx2 {vr(FL,2)}, v{FL+2}, s[{sWS}:{sWS+3}], s{sStOff} offen offset:{i*8}", kind="vmem"))
            e.nop(1)
    e.salu("s_waitcnt lgkmcnt(0)")
    e.label("L_end")
    e.salu("s_endpgm")
    for lab in lpolls:
        e.label(lab + "_slp")
        e.salu(f"s_sleep {o.lsleep}")
        e.salu(f"s_branch {lab}")

    hdr = f"""; Kernarg layout for this problem (48 bytes, ptrs only, base s[0:1]):
;   offset  24: d_out     shape=(8, 32, 192, 128) dtype=bfloat16 (2 bytes/elem)
; waves 0-3 compute 48 q rows each (flash attention, online softmax; the running max is refreshed
; @launch grid=(256,1,1) block=(512,1,1) lds={LDS_BYTES}
.amdgcn_target "amdgcn-amd-amdhsa--gfx950"
.text
.globl {NAME}_kernel
.p2align 8
.type {NAME}_kernel,@function
{NAME}_kernel:
"""
    ftr = f"""
.section .rodata,"a"
.p2align 6
.amdhsa_kernel {NAME}_kernel
  .amdhsa_next_free_vgpr 256
  .amdhsa_next_free_sgpr {96 if o.stamp else 48}
  .amdhsa_accum_offset 256
  .amdhsa_group_segment_fixed_size 0
  .amdhsa_kernarg_size 48
  .amdhsa_user_sgpr_count 2
  .amdhsa_user_sgpr_kernarg_segment_ptr 1
  .amdhsa_system_sgpr_workgroup_id_x 1
.end_amdhsa_kernel
"""
    body = "\n".join(("" if i.kind == "label" else "    ") + i.text for i in e.out)
    return hdr + body + ftr, nb

if __name__ == "__main__":
    o = Opt()
    out = f"cdna_kernels/{NAME}.s"
    for a in sys.argv[1:]:
        k, v = a.split("=")
        if k == "out":
            out = v
        else:
            assert hasattr(o, k), k
            setattr(o, k, float(v) if isinstance(getattr(o, k), float) else int(v))
    txt, nb = gen(o)
    open(out, "w").write(txt)
    print("wrote", out, "hazards:", nb, "lines:", txt.count("\n"), "lds", LDS_BYTES)
```
